```python
import torch

def _softmax(x, axis=-1):
    return torch.softmax(x, dim=axis)

def _gelu(x):
    return torch.nn.functional.gelu(x, approximate='tanh')

def _silu(x):
    return torch.nn.functional.silu(x)

def _sigmoid(x):
    return torch.sigmoid(x)

def _layernorm(x, axis=-1, eps=1e-05):
    m = x.mean(dim=axis, keepdim=True)
    v = x.var(dim=axis, keepdim=True, unbiased=False)
    return (x - m) / torch.sqrt(v + eps)

def _scatter_add(tgt, idx, src, axis=0):
    return tgt.clone().index_add_(axis, idx, src)

def _segment_sum(src, seg, n):
    out = torch.zeros((n,) + src.shape[1:], dtype=src.dtype)
    return out.index_add_(0, seg, src)

def _pad(x, pw):
    flat = tuple((v for pair in reversed(pw) for v in pair))
    return torch.nn.functional.pad(x, flat)
kernel_name = 'standalone__tree_speculative_verify_tree_attention_over_candidate_token_tree__decode'

def setup_inputs():

    _w = lambda a: (lambda t: t.to(torch.bfloat16) if t.is_floating_point() else t)(torch.as_tensor(a))
    B, Hq, Hkv, T, C, D = (2, 32, 16, 1, 8192, 128)
    tree_mask = torch.zeros((B, T, T), dtype=float)
    for b in range(B):
        parent = torch.zeros(T, dtype=torch.int64)
        for i in range(1, T):
            parent[i] = int(torch.randint(0, i, (1,)).item())
        for i in range(T):
            j = i
            tree_mask[b, i, j] = 1.0
            while j > 0:
                j = parent[j]
                tree_mask[b, i, j] = 1.0
    return {'q': _w((lambda *s: torch.randn(*s, dtype=torch.bfloat16) * 0.8)(B, Hq, T, D)), 'k_cache': _w((lambda *s: torch.randn(*s, dtype=torch.bfloat16) * 0.8)(B, Hkv, C, D)), 'v_cache': _w((lambda *s: torch.randn(*s, dtype=torch.bfloat16) * 0.05)(B, Hkv, C, D)), 'k_tree': _w((lambda *s: torch.randn(*s, dtype=torch.bfloat16) * 0.8)(B, Hkv, T, D)), 'v_tree': _w((lambda *s: torch.randn(*s, dtype=torch.bfloat16) * 0.05)(B, Hkv, T, D)), 'tree_mask': _w(tree_mask)}

def reference(q, k_cache, v_cache, k_tree, v_tree, tree_mask):
    B, Hq, T, D = q.shape
    Hkv, C = (k_cache.shape[1], k_cache.shape[2])
    rep = Hq // Hkv
    kc = (lambda x, n, axis: torch.repeat_interleave(x, n, dim=axis))(k_cache, rep, axis=1)
    vc = (lambda x, n, axis: torch.repeat_interleave(x, n, dim=axis))(v_cache, rep, axis=1)
    kt = (lambda x, n, axis: torch.repeat_interleave(x, n, dim=axis))(k_tree, rep, axis=1)
    vt = (lambda x, n, axis: torch.repeat_interleave(x, n, dim=axis))(v_tree, rep, axis=1)
    k = torch.concatenate([kc, kt], axis=2)
    v = torch.concatenate([vc, vt], axis=2)
    scale = D ** (-0.5)
    scores = torch.einsum('bhqd,bhkd->bhqk', q, k) * scale
    ctx_mask = torch.ones((B, 1, T, C), dtype=scores.dtype)
    tm = tree_mask[:, None, :, :].clone()
    full_mask = torch.concatenate([ctx_mask, tm], axis=-1)
    scores = scores + (1.0 - full_mask) * -1000000000.0
    p = _softmax(scores, axis=-1)
    return torch.einsum('bhqk,bhkd->bhqd', p, v)
```

```python
import sys, argparse

NAME = "standalone__tree_speculative_verify_tree_attention_over_candidate_token_tree__decode"

HEADER = """; Kernarg layout for this problem (72 bytes, ptrs only, base s[0:1]):
"""

import struct
def f32bits(x):
    return struct.unpack("<I", struct.pack("<f", x))[0]

C1 = (128 ** -0.5) * 1.4426950408889634
MASKC = -1.0e9 * 1.4426950408889634


class G:
    def __init__(self):
        self.l = []
    def __call__(self, s):
        self.l.append("    " + s)
    def label(self, s):
        self.l.append(s + ":")
    def text(self):
        return "\n".join(self.l) + "\n"


def gen(args):
    NW = 8
    NK = 32
    NV = 32
    NVUP = 24
    ldf = (" " + args.ldflags) if args.ldflags else ""
    g = G()
    vTid, vLane, vWave, vT3, vT4, vT5 = 0, 1, 2, 3, 4, 5
    vK, vV = 6, 7
    QA, QB = 8, 12
    MSK = 16
    D0, D1 = 20, 24
    T = [28, 29, 30, 31]
    SLOT0 = 32
    def slot(i):
        return SLOT0 + 4 * i
    def kreg(j):
        return slot(j)
    def vreg(j):
        return slot(NK + j) if j < NVUP else slot(j - NVUP)
    def r4(b):
        return f"v[{b}:{b+3}]"
    SC = slot(8)
    LDS_O, LDS_MAX, LDS_L = 0, 8192, 8256
    stamp = args.stamp

    g("s_cmp_ge_u32 s2, 256")
    g("s_cbranch_scc1 L_end")
    if stamp:
        g("s_memrealtime s[40:41]")
    g("s_load_dwordx16 s[4:19], s[0:1], 0")
    g("s_load_dwordx2 s[20:21], s[0:1], 64")
    g(f"v_and_b32 v{vLane}, 63, v0")
    g(f"v_lshrrev_b32 v{vWave}, 6, v0")
    g("s_lshl_b32 s3, s2, 18")
    g("s_add_u32 s3, s3, 4096")
    g(f"v_lshlrev_b32 v{vT3}, 15, v{vWave}")
    g(f"v_add_u32 v{vT3}, s3, v{vT3}")
    g(f"v_readfirstlane_b32 s22, v{vWave}")
    g(f"v_lshl_add_u32 v{vV}, v{vLane}, 4, v{vT3}")
    g(f"v_bfe_u32 v{vT4}, v{vLane}, 2, 2")
    g(f"v_lshl_add_u32 v{vT3}, v{vT4}, 8, v{vT3}")
    g(f"v_lshrrev_b32 v{vT5}, 4, v{vLane}")
    g(f"v_lshl_add_u32 v{vT3}, v{vT5}, 6, v{vT3}")
    g(f"v_and_b32 v{vK}, 3, v{vLane}")
    g(f"v_lshl_add_u32 v{vK}, v{vK}, 4, v{vT3}")
    g("s_lshr_b32 s23, s2, 3")
    g("s_lshl_b32 s24, s23, 9")
    g(f"v_lshlrev_b32 v{vT5}, 6, v{vT5}")
    g(f"v_lshl_add_u32 v{vT5}, v{vT4}, 4, v{vT5}")
    g(f"v_and_b32 v{vT3}, 1, v{vLane}")
    g(f"v_lshl_add_u32 v{vT3}, v{vT3}, 8, v{vT5}")
    g(f"v_add_u32 v{vT3}, s24, v{vT3}")
    g("s_waitcnt lgkmcnt(0)")
    g(f"global_load_dwordx4 {r4(QB)}, v{vT3}, s[4:5]")
    for j in range(NK):
        off = (j % 8) * 1024 - 4096
        g(f"global_load_dwordx4 {r4(kreg(j))}, v{vK}, s[6:7] offset:{off}{ldf}")
        if j % 8 == 7 and j != NK - 1:
            g(f"v_add_u32 v{vK}, 0x2000, v{vK}")
    if args.issue_barrier:
        g("s_barrier")
    for j in range(NVUP):
        off = (j % 8) * 1024 - 4096
        g(f"global_load_dwordx4 {r4(vreg(j))}, v{vV}, s[8:9] offset:{off}{ldf}")
        if j % 8 == 7:
            g(f"v_add_u32 v{vV}, 0x2000, v{vV}")
    g(f"s_mov_b32 s25, 0x{f32bits(C1):08x}")
    g(f"v_and_b32 v{vT3}, 1, v{vLane}")
    g(f"v_lshlrev_b32 v{vT3}, 4, v{vT3}")
    g(f"v_mov_b32 v{vT4}, 0xffff")
    g(f"v_lshlrev_b32 v{vT3}, v{vT3}, v{vT4}")
    g(f"v_bfe_u32 v{vT4}, v{vLane}, 1, 2")
    for r in range(4):
        g(f"v_cmp_eq_u32 vcc, {r}, v{vT4}")
        g("s_nop 1")
        g(f"v_cndmask_b32 v{MSK+r}, 0, v{vT3}, vcc")
    g(f"v_and_b32 v{vT3}, 2, v{vLane}")
    g(f"v_cmp_eq_u32 vcc, 0, v{vT3}")
    outstanding_after = NK + NVUP
    g(f"s_waitcnt vmcnt({outstanding_after})")
    g("s_nop 0")
    for r in range(4):
        g(f"v_cndmask_b32 v{QA+r}, 0, v{QB+r}, vcc")
    for r in range(4):
        g(f"v_cndmask_b32 v{QB+r}, v{QB+r}, 0, vcc")
    issued_v = NVUP
    for t in range(4):
        n = NK - 8 * (t + 1) + issued_v
        g(f"s_waitcnt vmcnt({n})")
        for jj in range(4):
            D = D0 if jj % 2 == 0 else D1
            ja, jb = 8 * t + 2 * jj, 8 * t + 2 * jj + 1
            g(f"v_mfma_f32_16x16x32_bf16 {r4(D)}, {r4(kreg(ja))}, {r4(QA)}, 0")
            g(f"v_mfma_f32_16x16x32_bf16 {r4(D)}, {r4(kreg(jb))}, {r4(QB)}, {r4(D)}")
            g("s_nop 7")
            bm = 1 << jj
            a, b, c, d = [D + ((jj + i) % 4) for i in range(4)]
            g(f"v_add_f32_dpp v{vT3}, v{b}, v{a} row_ror:12 row_mask:0xf bank_mask:0xf")
            g(f"v_add_f32_dpp v{vT4}, v{d}, v{c} row_ror:12 row_mask:0xf bank_mask:0xf")
            g("s_nop 1")
            g(f"v_add_f32_dpp v{T[t]}, v{vT4}, v{vT3} row_ror:8 row_mask:0xf bank_mask:0x{bm:x}")
            g("s_nop 0")
        if t == 0:
            for j in range(NVUP, NV):
                off = (j % 8) * 1024 - 4096
                g(f"global_load_dwordx4 {r4(vreg(j))}, v{vV}, s[8:9] offset:{off}{ldf}")
            issued_v = NV
    vm, vm2 = vT3, vT4
    def xreduce(op, a, b):
        g("s_nop 1")
        g(f"{op}_dpp v{b}, v{a}, v{a} quad_perm:[2,3,0,1] row_mask:0xf bank_mask:0xf")
        g("s_nop 1")
        g(f"{op}_dpp v{a}, v{b}, v{b} row_ror:4 row_mask:0xf bank_mask:0xf")
        g("s_nop 1")
        g(f"{op}_dpp v{b}, v{a}, v{a} row_ror:8 row_mask:0xf bank_mask:0xf")
        g(f"v_mov_b32 v{a}, v{b}")
        g("s_nop 1")
        g(f"v_permlane16_swap_b32 v{a}, v{b}")
        g("s_nop 1")
        g(f"{op} v{a}, v{a}, v{b}")
        g(f"v_mov_b32 v{b}, v{a}")
        g("s_nop 1")
        g(f"v_permlane32_swap_b32 v{a}, v{b}")
        g("s_nop 1")
        g(f"{op} v{a}, v{a}, v{b}")
    g(f"v_max3_f32 v{vm}, v{T[0]}, v{T[1]}, v{T[2]}")
    g(f"v_max_f32 v{vm}, v{vm}, v{T[3]}")
    xreduce("v_max_f32", vm, vm2)
    vLA = vT5
    g(f"v_and_b32 v{vLA}, 1, v{vLane}")
    g(f"v_lshlrev_b32 v{vLA}, 5, v{vLA}")
    g(f"v_lshl_add_u32 v{D0}, v{vWave}, 2, v{vLA}")
    g(f"ds_write_b32 v{D0}, v{vm} offset:{LDS_MAX}")
    g("s_waitcnt lgkmcnt(0)")
    g("s_barrier")
    g(f"ds_read_b128 {r4(SC)}, v{vLA} offset:{LDS_MAX}")
    g(f"ds_read_b128 {r4(SC+4)}, v{vLA} offset:{LDS_MAX+16}")
    g("s_waitcnt lgkmcnt(0)")
    g(f"v_max3_f32 v{vm}, v{SC}, v{SC+1}, v{SC+2}")
    g(f"v_max3_f32 v{vm}, v{vm}, v{SC+3}, v{SC+4}")
    g(f"v_max3_f32 v{vm}, v{vm}, v{SC+5}, v{SC+6}")
    g(f"v_max_f32 v{vm}, v{vm}, v{SC+7}")
    vMc = vK
    g(f"v_mul_f32 v{vMc}, s25, v{vm}")
    for t in range(4):
        g(f"v_fma_f32 v{T[t]}, v{T[t]}, s25, -v{vMc}")
    for t in range(4):
        g(f"v_exp_f32 v{T[t]}, v{T[t]}")
    g("s_nop 0")
    for t in range(4):
        g(f"v_cvt_pk_bf16_f32 v{T[t]}, v{T[t]}, v{T[t]}")
    for t in range(4):
        g(f"v_and_b32 v{D1+t}, 0xffff0000, v{T[t]}")
    g(f"v_add_f32 v{vm}, v{D1}, v{D1+1}")
    g(f"v_add_f32 v{vm2}, v{D1+2}, v{D1+3}")
    g(f"v_add_f32 v{vm}, v{vm}, v{vm2}")
    xreduce("v_add_f32", vm, vm2)
    g(f"ds_write_b32 v{D0}, v{vm} offset:{LDS_L}")
    vOA = vT5
    g(f"v_lshrrev_b32 v{vm}, 5, v{vLane}")
    g(f"v_lshlrev_b32 v{vm}, 9, v{vm}")
    g(f"v_lshl_add_u32 v{vOA}, v{vWave}, 10, v{vm}")
    g(f"v_and_b32 v{vm}, 15, v{vLane}")
    g(f"v_lshl_add_u32 v{vOA}, v{vm}, 5, v{vOA}")
    g(f"v_bfe_u32 v{vm}, v{vLane}, 4, 1")
    g(f"v_lshl_add_u32 v{vOA}, v{vm}, 4, v{vOA}")

    TR = slot(16)
    vKT, vVT, vMt, vM2, vRec, vRec2, vOut = TR, TR + 4, TR + 10, TR + 11, TR + 12, TR + 13, TR + 14
    vVTf = TR + 6
    g("s_cmp_lg_u32 s22, 0")
    g("s_cbranch_scc1 L_pv")
    g("s_lshl_b32 s26, s23, 8")
    g(f"v_lshrrev_b32 v{vm}, 4, v{vLane}")
    g(f"v_lshlrev_b32 v{vm}, 6, v{vm}")
    g(f"v_and_b32 v{vm2}, 3, v{vLane}")
    g(f"v_lshl_add_u32 v{vm}, v{vm2}, 4, v{vm}")
    g(f"v_add_u32 v{vm}, s26, v{vm}")
    g(f"global_load_dwordx4 {r4(vKT)}, v{vm}, s[10:11]")
    g(f"v_and_b32 v{vm2}, 31, v{vLane}")
    g(f"v_lshlrev_b32 v{vm2}, 3, v{vm2}")
    g(f"v_add_u32 v{vm2}, s26, v{vm2}")
    g(f"global_load_dwordx2 v[{vVT}:{vVT+1}], v{vm2}, s[12:13]")
    g("s_load_dword s27, s[14:15], 0")
    g(f"v_readlane_b32 s28, v{vMc}, 0")
    g(f"v_readlane_b32 s29, v{vMc}, 1")
    g(f"v_cmp_gt_u32 s[30:31], 32, v{vLane}")
    g("s_nop 0")
    g(f"v_mov_b32 v{vM2}, s29")
    g(f"v_mov_b32 v{vm}, s28")
    g("s_nop 0")
    g(f"v_cndmask_b32 v{vM2}, v{vM2}, v{vm}, s[30:31]")
    g("s_lshl_b32 s32, s2, 11")
    g(f"v_lshlrev_b32 v{vRec}, 4, v{vLane}")
    g(f"v_lshlrev_b32 v{vRec2}, 3, v{vLane}")
    g(f"v_add_u32 v{vOut}, s24, v{vRec2}")
    g("s_branch L_pv0")

    def pv(extra):
        nsets = 4
        ACC = D1
        for j in range(NV):
            t, jk = j // 8, j % 8
            A = SC + 4 * (j % nsets)
            tmp = SC + 16 + (j % nsets)
            g(f"v_mov_b32_dpp v{tmp}, v{T[t]} row_newbcast:{2*jk} row_mask:0xf bank_mask:0x3")
            g("s_nop 1")
            g(f"v_mov_b32_dpp v{tmp}, v{T[t]} row_newbcast:{2*jk+1} row_mask:0xf bank_mask:0xc")
            for r in range(4):
                g(f"v_and_b32 v{A+r}, v{tmp}, v{MSK+r}")
            g(f"s_waitcnt vmcnt({NV-1-j+extra})")
            g("s_nop 0")
            c = "0" if j == 0 else r4(ACC)
            g(f"v_mfma_f32_16x16x32_bf16 {r4(ACC)}, {r4(A)}, {r4(vreg(j))}, {c}")
        g("s_nop 7")
        g(f"ds_write_b128 v{vOA}, {r4(ACC)} offset:{LDS_O}")
        g("s_waitcnt lgkmcnt(0)")
        g("s_barrier")

    g.label("L_pv")
    pv(0)
    g("s_endpgm")
    g.label("L_pv0")
    pv(2)
    R = slot(32)
    for w in range(NW):
        g(f"ds_read_b128 {r4(R+4*w)}, v{vRec} offset:{LDS_O + 1024*w}")
    g(f"v_lshrrev_b32 v{vm}, 5, v{vLane}")
    g(f"v_lshlrev_b32 v{vm}, 5, v{vm}")
    g(f"ds_read_b128 {r4(R+32)}, v{vm} offset:{LDS_L}")
    g(f"ds_read_b128 {r4(R+36)}, v{vm} offset:{LDS_L+16}")
    g(f"v_add_u32 v{vRec}, s32, v{vRec}")
    g(f"v_add_u32 v{vRec2}, s32, v{vRec2}")
    g("s_waitcnt lgkmcnt(0)")
    for r in range(4):
        g(f"v_add_f32 v{R+r}, v{R+r}, v{R+4+r}")
        g(f"v_add_f32 v{R+8+r}, v{R+8+r}, v{R+12+r}")
        g(f"v_add_f32 v{R+16+r}, v{R+16+r}, v{R+20+r}")
        g(f"v_add_f32 v{R+24+r}, v{R+24+r}, v{R+28+r}")
    for r in range(4):
        g(f"v_add_f32 v{R+r}, v{R+r}, v{R+8+r}")
        g(f"v_add_f32 v{R+16+r}, v{R+16+r}, v{R+24+r}")
    for r in range(4):
        g(f"v_add_f32 v{R+r}, v{R+r}, v{R+16+r}")
    g(f"global_store_dwordx4 v{vRec}, {r4(R)}, s[20:21] sc1")
    g(f"v_add_f32 v{R+32}, v{R+32}, v{R+33}")
    g(f"v_add_f32 v{R+34}, v{R+34}, v{R+35}")
    g(f"v_add_f32 v{R+36}, v{R+36}, v{R+37}")
    g(f"v_add_f32 v{R+38}, v{R+38}, v{R+39}")
    g(f"v_add_f32 v{R+32}, v{R+32}, v{R+34}")
    g(f"v_add_f32 v{R+36}, v{R+36}, v{R+38}")
    g(f"v_add_f32 v{R+41}, v{R+32}, v{R+36}")
    g(f"v_mov_b32 v{R+40}, v{vM2}")
    g(f"global_store_dwordx2 v{vRec2}, v[{R+40}:{R+41}], s[20:21] offset:1024 sc1")
    g("s_waitcnt vmcnt(2)")
    g(f"v_mfma_f32_16x16x32_bf16 {r4(D0)}, {r4(vKT)}, {r4(QA)}, 0")
    g(f"v_lshlrev_b32 v{vVTf}, 16, v{vVT}")
    g(f"v_and_b32 v{vVTf+1}, 0xffff0000, v{vVT}")
    g(f"v_lshlrev_b32 v{vVTf+2}, 16, v{vVT+1}")
    g(f"v_and_b32 v{vVTf+3}, 0xffff0000, v{vVT+1}")
    g("s_lshr_b32 s33, s23, 4")
    g("s_lshl_b32 s33, s33, 4")
    g("s_lshr_b32 s27, s27, s33")
    g("s_lshl_b32 s27, s27, 16")
    g("s_nop 3")
    g(f"v_add_f32_dpp v{vT3}, v{D0+1}, v{D0} row_ror:12 row_mask:0xf bank_mask:0xf")
    g(f"v_add_f32_dpp v{vT4}, v{D0+3}, v{D0+2} row_ror:12 row_mask:0xf bank_mask:0xf")
    g("s_nop 1")
    g(f"v_add_f32_dpp v{vT3}, v{vT4}, v{vT3} row_ror:8 row_mask:0xf bank_mask:0xf")
    g("s_nop 1")
    g(f"v_readlane_b32 s28, v{vT3}, 0")
    g(f"v_readlane_b32 s29, v{vT3}, 1")
    g("s_nop 1")
    g(f"v_mov_b32 v{vMt}, s29")
    g(f"v_mov_b32 v{vm}, s28")
    g(f"v_cndmask_b32 v{vMt}, v{vMt}, v{vm}, s[30:31]")
    g(f"v_sub_f32 v{vm}, 1.0, s27")
    g(f"v_mul_f32 v{vm}, 0x{f32bits(MASKC):08x}, v{vm}")
    g(f"v_fma_f32 v{vMt}, v{vMt}, s25, v{vm}")
    g("s_lshl_b32 s34, s23, 2")
    g(f"v_mov_b32 v{vm}, s34")
    g(f"v_mov_b32 v{vm2}, 1")
    g("s_mov_b64 exec, 1")
    g("s_waitcnt vmcnt(0)")
    g(f"global_atomic_add v{vm2}, v{vm}, v{vm2}, s[18:19] sc0")
    g("s_lshl_b32 s35, s23, 14")
    g("s_add_u32 s35, s35, 4096")
    g("s_waitcnt vmcnt(0)")
    g(f"v_readfirstlane_b32 s36, v{vm2}")
    g("s_mov_b64 exec, -1")
    if stamp:
        g("s_memrealtime s[42:43]")
        g("s_lshl_b32 s44, s2, 5")
        g("s_add_u32 s44, s44, 0x100000")
        g(f"v_mov_b32 v{R+44}, s44")
        g("s_waitcnt lgkmcnt(0)")
        g(f"v_mov_b32 v{R+48}, s40")
        g(f"v_mov_b32 v{R+49}, s41")
        g(f"v_mov_b32 v{R+50}, s42")
        g(f"v_mov_b32 v{R+51}, s43")
        g(f"global_store_dwordx4 v{R+44}, {r4(R+48)}, s[20:21]")
    g("s_cmp_lg_u32 s36, 7")
    g("s_cbranch_scc1 L_end")
    g(f"v_lshlrev_b32 v{vRec}, 4, v{vLane}")
    g(f"v_add_u32 v{vRec}, s35, v{vRec}")
    g(f"v_lshlrev_b32 v{vRec2}, 3, v{vLane}")
    g(f"v_add_u32 v{vRec2}, s35, v{vRec2}")
    g(f"v_add_u32 v{vm}, 0x2000, v{vRec}")
    g(f"v_add_u32 v{vm2}, 0x2000, v{vRec2}")
    ML = R + 32
    for s in range(8):
        a = vRec2 if s < 4 else vm2
        off = (s % 4) * 2048 - 4096 + 1024
        g(f"global_load_dwordx2 v[{ML+2*s}:{ML+2*s+1}], v{a}, s[20:21] offset:{off} sc1")
    for s in range(8):
        a = vRec if s < 4 else vm
        off = (s % 4) * 2048 - 4096
        g(f"global_load_dwordx4 {r4(R+4*s)}, v{a}, s[20:21] offset:{off} sc1")
    g("s_waitcnt vmcnt(8)")
    vG = vT3
    g(f"v_max3_f32 v{vG}, v{vMt}, v{ML}, v{ML+2}")
    g(f"v_max3_f32 v{vG}, v{vG}, v{ML+4}, v{ML+6}")
    g(f"v_max3_f32 v{vG}, v{vG}, v{ML+8}, v{ML+10}")
    g(f"v_max3_f32 v{vG}, v{vG}, v{ML+12}, v{ML+14}")
    g(f"v_sub_f32 v{vMt}, v{vMt}, v{vG}")
    for s in range(8):
        g(f"v_sub_f32 v{ML+2*s}, v{ML+2*s}, v{vG}")
    g(f"v_exp_f32 v{vMt}, v{vMt}")
    for s in range(8):
        g(f"v_exp_f32 v{ML+2*s}, v{ML+2*s}")
    vL = vT4
    g(f"v_mov_b32 v{vL}, v{vMt}")
    for s in range(8):
        g(f"v_fmac_f32 v{vL}, v{ML+2*s}, v{ML+2*s+1}")
    for r in range(4):
        g(f"v_mul_f32 v{vVTf+r}, v{vVTf+r}, v{vMt}")
    g(f"v_rcp_f32 v{vL}, v{vL}")
    for s in range(8):
        g(f"s_waitcnt vmcnt({7-s})")
        for r in range(4):
            g(f"v_fmac_f32 v{vVTf+r}, v{ML+2*s}, v{R+4*s+r}")
    for r in range(4):
        g(f"v_mul_f32 v{vVTf+r}, v{vVTf+r}, v{vL}")
    g(f"v_cvt_pk_bf16_f32 v{D0}, v{vVTf}, v{vVTf+1}")
    g(f"v_cvt_pk_bf16_f32 v{D0+1}, v{vVTf+2}, v{vVTf+3}")
    g(f"global_store_dwordx2 v{vOut}, v[{D0}:{D0+1}], s[16:17]")
    if stamp:
        g("s_waitcnt vmcnt(0)")
        g("s_memrealtime s[42:43]")
        g("s_waitcnt lgkmcnt(0)")
        g(f"v_mov_b32 v{R+50}, s42")
        g(f"v_mov_b32 v{R+51}, s43")
        g(f"global_store_dwordx2 v{R+44}, v[{R+50}:{R+51}], s[20:21] offset:16")
    g.label("L_end")
    g("s_endpgm")

    out = HEADER
    out += "; @launch grid=(256,1,1) block=(512,1,1) lds=8448\n"
    out += f""".amdgcn_target "amdgcn-amd-amdhsa--gfx950"
.text
.globl {NAME}_kernel
.p2align 8
.type {NAME}_kernel,@function
{NAME}_kernel:
"""
    out += g.text()
    out += f""".section .rodata,"a"
.p2align 6
.amdhsa_kernel {NAME}_kernel
  .amdhsa_next_free_vgpr 256
  .amdhsa_next_free_sgpr 64
  .amdhsa_accum_offset 256
  .amdhsa_group_segment_fixed_size 0
  .amdhsa_kernarg_size 72
  .amdhsa_user_sgpr_count 2
  .amdhsa_user_sgpr_kernarg_segment_ptr 1
  .amdhsa_system_sgpr_workgroup_id_x 1
.end_amdhsa_kernel
"""
    return out


if __name__ == "__main__":
    ap = argparse.ArgumentParser()
    ap.add_argument("-o", default=None)
    ap.add_argument("--ldflags", default="")
    ap.add_argument("--issue-barrier", type=int, default=1)
    ap.add_argument("--stamp", type=int, default=0)
    a = ap.parse_args()
    s = gen(a)
    if a.o:
        open(a.o, "w").write(s)
    else:
        sys.stdout.write(s)
```

```python
import sys, argparse, struct

NAME = "standalone__tree_speculative_verify_tree_attention_over_candidate_token_tree__decode"

HEADER = """; Kernarg layout for this problem (72 bytes, ptrs only, base s[0:1]):
"""

def f32bits(x):
    return struct.unpack("<I", struct.pack("<f", x))[0]

C1 = (128 ** -0.5) * 1.4426950408889634
MASKC = -1.0e9 * 1.4426950408889634
DPPALL = "row_mask:0xf bank_mask:0xf"


class G:
    def __init__(self):
        self.l = []
    def __call__(self, s):
        self.l.append("    " + s)
    def label(self, s):
        self.l.append(s + ":")
    def text(self):
        return "\n".join(self.l) + "\n"


def r4(b):
    return f"v[{b}:{b+3}]"


def gen(a):
    NW = a.nw
    GW = a.g
    NT = 1024 // (32 * NW)
    NG = 2 * NT
    GW = min(GW, NG)
    ldf = (" " + a.ldflags) if a.ldflags else ""
    stamp = a.stamp
    g = G()
    vLane, vWave, vA, vB, vC = 1, 2, 3, 4, 5
    vK, vV = 6, 7
    Q = 8
    ACC = 12
    D0, D1 = 16, 20
    T0, T1 = 24, 25
    vM, vL, vPM = 26, 27, 28
    vAl = 29
    vOA = 30
    vE = 31
    AS = [32, 36]
    RING = 40
    def grp(n):
        return RING + 32 * (n % GW)
    nvgpr = RING + 32 * GW
    LDS_O = 0
    LDS_ML = NW * 1024
    lds_total = NW * 1024 + 2 * 4 * NW * 4
    tile_stride = (NW * 32 * 256) if a.interleave else (32 * 256)
    if a.interleave == 2:
        tile_stride = 8 * NW * 32 * 256
    wave_stride_log = 13 if a.interleave else (13 + (NT.bit_length() - 1))

    g("s_cmp_ge_u32 s2, 256")
    g("s_cbranch_scc1 L_end")
    if stamp:
        g("s_memrealtime s[40:41]")
    g("s_load_dwordx16 s[4:19], s[0:1], 0")
    g("s_load_dwordx2 s[20:21], s[0:1], 64")
    g(f"v_and_b32 v{vLane}, 63, v0")
    g(f"v_lshrrev_b32 v{vWave}, 6, v0")
    if a.xcdmap:
        g("s_and_b32 s23, s2, 7")
        g("s_lshl_b32 s23, s23, 2")
        g("s_bfe_u32 s3, s2, 0x20003")
        g("s_add_u32 s23, s23, s3")
        g("s_lshr_b32 s37, s2, 5")
    else:
        g("s_lshr_b32 s23, s2, 3")
        g("s_and_b32 s37, s2, 7")
    g("s_lshl_b32 s38, s23, 3")
    g("s_add_u32 s38, s38, s37")
    if a.interleave == 2:
        g("s_lshl_b32 s3, s23, 21")
        g(f"s_mul_i32 s39, s37, {NW * 32 * 256}")
        g("s_add_u32 s3, s3, s39")
    else:
        g("s_lshl_b32 s3, s38, 18")
    g("s_add_u32 s3, s3, 4096")
    g(f"v_lshlrev_b32 v{vA}, {wave_stride_log}, v{vWave}")
    g(f"v_add_u32 v{vA}, s3, v{vA}")
    g(f"v_readfirstlane_b32 s22, v{vWave}")
    g(f"v_lshl_add_u32 v{vV}, v{vLane}, 4, v{vA}")
    g(f"v_bfe_u32 v{vB}, v{vLane}, 2, 2")
    g(f"v_lshl_add_u32 v{vA}, v{vB}, 8, v{vA}")
    g(f"v_lshrrev_b32 v{vC}, 4, v{vLane}")
    g(f"v_lshl_add_u32 v{vA}, v{vC}, 6, v{vA}")
    g(f"v_and_b32 v{vK}, 3, v{vLane}")
    g(f"v_lshl_add_u32 v{vK}, v{vK}, 4, v{vA}")
    g("s_lshl_b32 s24, s23, 9")
    g(f"v_lshlrev_b32 v{vC}, 6, v{vC}")
    g(f"v_lshl_add_u32 v{vC}, v{vB}, 4, v{vC}")
    g(f"v_bfe_u32 v{vA}, v{vLane}, 1, 1")
    g(f"v_lshl_add_u32 v{vA}, v{vA}, 8, v{vC}")
    g(f"v_add_u32 v{vA}, s24, v{vA}")
    g("s_waitcnt lgkmcnt(0)")
    g(f"global_load_dwordx4 {r4(Q)}, v{vA}, s[4:5]")

    def issue(n):
        isv = n & 1
        ar, base = (vV, "s[8:9]") if isv else (vK, "s[6:7]")
        for j in range(8):
            g(f"global_load_dwordx4 {r4(grp(n)+4*j)}, v{ar}, {base} offset:{j*1024-4096}{ldf}")
        if n + 2 < NG:
            g(f"v_add_u32 v{ar}, 0x{tile_stride:x}, v{ar}")

    for n in range(GW):
        issue(n)
    issued = GW
    g(f"s_mov_b32 s25, 0x{f32bits(C1):08x}")
    g(f"v_and_b32 v{vA}, 1, v{vLane}")
    g(f"v_lshlrev_b32 v{vA}, 4, v{vA}")
    g(f"v_mov_b32 v{vB}, 0xffff")
    g(f"v_lshlrev_b32 v{vPM}, v{vA}, v{vB}")
    for s in AS:
        for r in range(4):
            g(f"v_mov_b32 v{s+r}, 0")
    g(f"v_lshlrev_b32 v{vOA}, 4, v0")
    g(f"v_mov_b32 v{vL}, 0")

    def xreduce(op, x, y):
        g("s_nop 1")
        g(f"{op}_dpp v{y}, v{x}, v{x} row_ror:4 {DPPALL}")
        g("s_nop 1")
        g(f"{op}_dpp v{x}, v{y}, v{y} row_ror:8 {DPPALL}")
        g(f"v_mov_b32 v{y}, v{x}")
        g("s_nop 1")
        g(f"v_permlane16_swap_b32 v{x}, v{y}")
        g(f"{op} v{x}, v{x}, v{y}")
        g(f"v_mov_b32 v{y}, v{x}")
        g("s_nop 1")
        g(f"v_permlane32_swap_b32 v{x}, v{y}")
        g(f"{op} v{x}, v{x}, v{y}")

    def ror(n):
        n %= 16
        return "quad_perm:[0,1,2,3]" if n == 0 else f"row_ror:{n}"

    for t in range(NT):
        nk, nv = 2 * t, 2 * t + 1
        kb = grp(nk)
        younger = (issued - nk - 1) * 8
        for j in range(8):
            D = D0 if j % 2 == 0 else D1
            if a.finewait or j == 0:
                w = younger + (7 - j if a.finewait else 0)
                g(f"s_waitcnt vmcnt({w})")
            if stamp and t == 0 and j == 0:
                g("s_memrealtime s[46:47]")
            g(f"v_mfma_f32_16x16x32_bf16 {r4(D)}, {r4(kb+4*j)}, {r4(Q)}, 0")
            if j >= 1:
                jp = j - 1
                Dp = D0 if jp % 2 == 0 else D1
                q = jp & 3
                T = T0 if jp < 4 else T1
                x, y, z, w_ = [Dp + ((q + i) % 4) for i in range(4)]
                g("s_nop 6")
                g(f"v_add_f32_dpp v{vA}, v{y}, v{x} row_ror:12 {DPPALL}")
                g(f"v_add_f32_dpp v{vB}, v{w_}, v{z} row_ror:12 {DPPALL}")
                g("s_nop 1")
                g(f"v_add_f32_dpp v{T}, v{vB}, v{vA} row_ror:8 row_mask:0xf bank_mask:0x{1<<q:x}")
        if issued < NG:
            issue(issued)
            issued += 1
        else:
            g("s_nop 4")
        Dp = D1
        q = 3
        x, y, z, w_ = [Dp + ((q + i) % 4) for i in range(4)]
        g(f"v_add_f32_dpp v{vA}, v{y}, v{x} row_ror:12 {DPPALL}")
        g(f"v_add_f32_dpp v{vB}, v{w_}, v{z} row_ror:12 {DPPALL}")
        g("s_nop 1")
        g(f"v_add_f32_dpp v{T1}, v{vB}, v{vA} row_ror:8 row_mask:0xf bank_mask:0x{1<<q:x}")
        g(f"v_max_f32 v{vA}, v{T0}, v{T1}")
        xreduce("v_max_f32", vA, vB)
        g(f"v_mul_f32 v{vA}, s25, v{vA}")
        if t == 0:
            g(f"v_mov_b32 v{vM}, v{vA}")
        else:
            g(f"v_max_f32 v{vA}, v{vA}, v{vM}")
            g(f"v_sub_f32 v{vAl}, v{vM}, v{vA}")
            g(f"v_mov_b32 v{vM}, v{vA}")
            g(f"v_exp_f32 v{vAl}, v{vAl}")
        g(f"v_fma_f32 v{T0}, v{T0}, s25, -v{vM}")
        g(f"v_fma_f32 v{T1}, v{T1}, s25, -v{vM}")
        g(f"v_exp_f32 v{T0}, v{T0}")
        g(f"v_exp_f32 v{T1}, v{T1}")
        if t > 0:
            g(f"v_mul_f32 v{vL}, v{vL}, v{vAl}")
            for r in range(4):
                qp = "[0,0,0,0]" if r < 2 else "[2,2,2,2]"
                g(f"v_mul_f32_dpp v{ACC+r}, v{vAl}, v{ACC+r} quad_perm:{qp} {DPPALL}")
        else:
            g("s_nop 0")
        g(f"v_cvt_pk_bf16_f32 v{T0}, v{T0}, v{T0}")
        g(f"v_cvt_pk_bf16_f32 v{T1}, v{T1}, v{T1}")
        g(f"v_and_b32 v{T0}, v{T0}, v{vPM}")
        g(f"v_and_b32 v{T1}, v{T1}, v{vPM}")
        g(f"v_add_f32 v{vL}, v{vL}, v{T0}")
        g(f"v_add_f32 v{vL}, v{vL}, v{T1}")
        if t == NT - 1:
            xreduce("v_add_f32", vL, vB)
            g(f"v_and_b32 v{vA}, 3, v{vLane}")
            g(f"v_mul_u32_u24 v{vA}, {4*NW}, v{vA}")
            g(f"v_lshl_add_u32 v{vB}, v{vWave}, 2, v{vA}")
            g(f"ds_write_b32 v{vB}, v{vM} offset:{LDS_ML}")
            g(f"ds_write_b32 v{vB}, v{vL} offset:{LDS_ML+16*NW}")
            g(f"v_mov_b32 v{vE}, v{vA}")
        vb = grp(nv)
        younger = (issued - nv - 1) * 8
        for j in range(8):
            A = AS[j % 2]
            T = T0 if j < 4 else T1
            q = j & 3
            for r in range(4):
                g(f"v_mov_b32_dpp v{A+r}, v{T} {ror(4*(r-q))} row_mask:0xf bank_mask:0x{1<<r:x}")
            if a.finewait or j == 0:
                w = younger + (7 - j if a.finewait else 0)
                g(f"s_waitcnt vmcnt({w})")
                g("s_nop 0")
            else:
                g("s_nop 1")
            c = "0" if (t == 0 and j == 0) else r4(ACC)
            g(f"v_mfma_f32_16x16x32_bf16 {r4(ACC)}, {r4(A)}, {r4(vb+4*j)}, {c}")
        if issued < NG:
            issue(issued)
            issued += 1
    g("s_nop 7")
    g(f"ds_write_b128 v{vOA}, {r4(ACC)} offset:{LDS_O}")
    g("s_cmp_lg_u32 s22, 0")
    g("s_cbranch_scc1 L_notw0")
    R = RING
    need = 4 * max(NW, 8) + 2 * max(NW, 8) + 24
    nvgpr = max(nvgpr, R + need + (16 if stamp else 0))
    MS = R + 4 * max(NW, 8)
    LS = MS + max(NW, 8)
    X = LS + max(NW, 8)
    vKT, vVT, vMt, vRec, vRec2, vOut = X, X + 4, X + 5, X + 6, X + 7, X + 8
    vVT0, vVT1 = X + 9, X + 10
    vML = X + 12
    ST = X + 24
    g("s_lshl_b32 s26, s23, 8")
    g(f"v_lshrrev_b32 v{vA}, 4, v{vLane}")
    g(f"v_lshlrev_b32 v{vB}, 6, v{vA}")
    g(f"v_and_b32 v{vC}, 3, v{vLane}")
    g(f"v_lshl_add_u32 v{vB}, v{vC}, 4, v{vB}")
    g(f"v_add_u32 v{vB}, s26, v{vB}")
    g(f"global_load_dwordx4 {r4(vKT)}, v{vB}, s[10:11]")
    g(f"v_and_b32 v{vC}, 15, v{vLane}")
    g(f"v_lshlrev_b32 v{vC}, 4, v{vC}")
    g(f"v_lshl_add_u32 v{vOut}, v{vA}, 2, v{vC}")
    g(f"v_add_u32 v{vC}, s26, v{vOut}")
    g(f"global_load_dword v{vVT}, v{vC}, s[12:13]")
    g("s_load_dword s27, s[14:15], 0")
    g(f"v_add_u32 v{vOut}, s24, v{vOut}")
    g("s_lshl_b32 s32, s38, 11")
    g(f"v_lshlrev_b32 v{vRec}, 4, v{vLane}")
    g(f"v_lshlrev_b32 v{vRec2}, 3, v{vLane}")
    g("s_waitcnt lgkmcnt(0)")
    g("s_barrier")
    if stamp:
        g("s_memrealtime s[48:49]")
    for i in range(NW // 4):
        g(f"ds_read_b128 {r4(MS+4*i)}, v{vE} offset:{LDS_ML+16*i}")
    for i in range(NW // 4):
        g(f"ds_read_b128 {r4(LS+4*i)}, v{vE} offset:{LDS_ML+16*NW+16*i}")
    for w in range(NW):
        g(f"ds_read_b128 {r4(R+4*w)}, v{vRec} offset:{LDS_O+1024*w}")
    g(f"v_add_u32 v{vRec}, s32, v{vRec}")
    g(f"v_add_u32 v{vRec2}, s32, v{vRec2}")
    g(f"s_waitcnt lgkmcnt({min(15, NW + NW // 4)})")

    def combine(n, Mx, Lx, Ox, strideML, waitfn, extra=None):
        ms = [Mx + strideML * i for i in range(n)]
        ls = [Lx + strideML * i for i in range(n)]
        lst = ms + ([extra] if extra is not None else [])
        g(f"v_max3_f32 v{vA}, v{lst[0]}, v{lst[1]}, v{lst[2]}")
        k = 3
        while k < len(lst):
            if k + 1 < len(lst):
                g(f"v_max3_f32 v{vA}, v{vA}, v{lst[k]}, v{lst[k+1]}")
                k += 2
            else:
                g(f"v_max_f32 v{vA}, v{vA}, v{lst[k]}")
                k += 1
        for m in lst:
            g(f"v_sub_f32 v{m}, v{m}, v{vA}")
        for m in lst:
            g(f"v_exp_f32 v{m}, v{m}")
        waitfn(-1)
        if extra is not None:
            g(f"v_fma_f32 v{vB}, v{ms[0]}, v{ls[0]}, v{extra}")
        else:
            g(f"v_mul_f32 v{vB}, v{ms[0]}, v{ls[0]}")
        for i in range(1, n):
            g(f"v_fmac_f32 v{vB}, v{ms[i]}, v{ls[i]}")
        for i in range(n):
            waitfn(i)
            for r in range(4):
                qp = "[0,0,0,0]" if r < 2 else "[2,2,2,2]"
                if i == 0 and extra is None:
                    g(f"v_mul_f32_dpp v{ACC+r}, v{ms[i]}, v{Ox+4*i+r} quad_perm:{qp} {DPPALL}")
                else:
                    g(f"v_fmac_f32_dpp v{ACC+r}, v{ms[i]}, v{Ox+4*i+r} quad_perm:{qp} {DPPALL}")

    def w1(i):
        if i == -1:
            g(f"s_waitcnt lgkmcnt({min(15, NW)})")
        else:
            g(f"s_waitcnt lgkmcnt({min(15, NW-1-i)})")
    combine(NW, MS, LS, R, 1, w1)
    g(f"global_store_dwordx4 v{vRec}, {r4(ACC)}, s[20:21] sc1")
    g(f"v_mov_b32 v{vML}, v{vA}")
    g(f"v_mov_b32 v{vML+1}, v{vB}")
    g(f"global_store_dwordx2 v{vRec2}, v[{vML}:{vML+1}], s[20:21] offset:1024 sc1")
    g("s_waitcnt vmcnt(2)")
    g(f"v_mfma_f32_16x16x32_bf16 {r4(D0)}, {r4(vKT)}, {r4(Q)}, 0")
    g(f"v_lshlrev_b32 v{vVT0}, 16, v{vVT}")
    g(f"v_and_b32 v{vVT1}, 0xffff0000, v{vVT}")
    g("s_lshr_b32 s33, s23, 4")
    g("s_lshl_b32 s33, s33, 4")
    g("s_lshr_b32 s27, s27, s33")
    g("s_lshl_b32 s27, s27, 16")
    g("s_nop 3")
    g(f"v_add_f32_dpp v{vA}, v{D0+1}, v{D0} row_ror:12 {DPPALL}")
    g(f"v_add_f32_dpp v{vB}, v{D0+3}, v{D0+2} row_ror:12 {DPPALL}")
    g("s_nop 1")
    g(f"v_add_f32_dpp v{vA}, v{vB}, v{vA} row_ror:8 {DPPALL}")
    g("s_nop 1")
    g(f"v_mov_b32_dpp v{vMt}, v{vA} quad_perm:[0,1,2,3] row_mask:0xf bank_mask:0x1")
    g("s_nop 1")
    g(f"v_mov_b32_dpp v{vMt}, v{vA} row_ror:4 row_mask:0xf bank_mask:0x2")
    g("s_nop 1")
    g(f"v_mov_b32_dpp v{vMt}, v{vA} row_ror:8 row_mask:0xf bank_mask:0x4")
    g("s_nop 1")
    g(f"v_mov_b32_dpp v{vMt}, v{vA} row_ror:12 row_mask:0xf bank_mask:0x8")
    g(f"v_sub_f32 v{vB}, 1.0, s27")
    g(f"v_mul_f32 v{vB}, 0x{f32bits(MASKC):08x}, v{vB}")
    g(f"v_fma_f32 v{vMt}, v{vMt}, s25, v{vB}")
    g("s_lshl_b32 s34, s23, 2")
    g(f"v_mov_b32 v{vA}, s34")
    g(f"v_mov_b32 v{vB}, 1")
    g("s_mov_b64 exec, 1")
    g("s_waitcnt vmcnt(0)")
    g(f"global_atomic_add v{vB}, v{vA}, v{vB}, s[18:19] sc0")
    g("s_lshl_b32 s35, s23, 14")
    g("s_add_u32 s35, s35, 4096")
    g("s_waitcnt vmcnt(0)")
    g(f"v_readfirstlane_b32 s36, v{vB}")
    g("s_mov_b64 exec, -1")
    if stamp:
        g("s_memrealtime s[42:43]")
        g("s_lshl_b32 s44, s2, 6")
        g("s_add_u32 s44, s44, 0x100000")
        g(f"v_mov_b32 v{ST}, s44")
        g("s_getreg_b32 s50, hwreg(HW_REG_XCC_ID)")
        g("s_getreg_b32 s51, hwreg(HW_REG_HW_ID)")
        g("s_waitcnt lgkmcnt(0)")
        for i, sr in enumerate([40, 41, 46, 47, 48, 49, 42, 43, 50, 51]):
            g(f"v_mov_b32 v{ST+2+i}, s{sr}")
        g(f"global_store_dwordx4 v{ST}, {r4(ST+2)}, s[20:21]")
        g(f"global_store_dwordx4 v{ST}, {r4(ST+6)}, s[20:21] offset:16")
        g(f"global_store_dwordx2 v{ST}, v[{ST+10}:{ST+11}], s[20:21] offset:40")
    g("s_cmp_lg_u32 s36, 7")
    g("s_cbranch_scc1 L_end")
    g(f"v_lshlrev_b32 v{vRec}, 4, v{vLane}")
    g(f"v_add_u32 v{vRec}, s35, v{vRec}")
    g(f"v_lshlrev_b32 v{vRec2}, 3, v{vLane}")
    g(f"v_add_u32 v{vRec2}, s35, v{vRec2}")
    g(f"v_add_u32 v{vC}, 0x2000, v{vRec}")
    g(f"v_add_u32 v{vE}, 0x2000, v{vRec2}")
    for s in range(8):
        ad = vRec2 if s < 4 else vE
        off = (s % 4) * 2048 - 4096 + 1024
        g(f"global_load_dwordx2 v[{MS+2*s}:{MS+2*s+1}], v{ad}, s[20:21] offset:{off} sc1")
    for s in range(8):
        ad = vRec if s < 4 else vC
        off = (s % 4) * 2048 - 4096
        g(f"global_load_dwordx4 {r4(R+4*s)}, v{ad}, s[20:21] offset:{off} sc1")
    g("s_waitcnt vmcnt(8)")
    def w2(i):
        if i == -1:
            g("s_nop 1")
            g(f"v_mul_f32_dpp v{ACC}, v{vMt}, v{vVT0} quad_perm:[0,0,0,0] {DPPALL}")
            g(f"v_mul_f32_dpp v{ACC+1}, v{vMt}, v{vVT1} quad_perm:[0,0,0,0] {DPPALL}")
            g(f"v_mul_f32_dpp v{ACC+2}, v{vMt}, v{vVT0} quad_perm:[2,2,2,2] {DPPALL}")
            g(f"v_mul_f32_dpp v{ACC+3}, v{vMt}, v{vVT1} quad_perm:[2,2,2,2] {DPPALL}")
        else:
            g(f"s_waitcnt vmcnt({7-i})")
            if i == 0:
                g(f"v_rcp_f32 v{vB}, v{vB}")
    combine(8, MS, MS + 1, R, 2, w2, extra=vMt)
    g("s_nop 1")
    g(f"v_mul_f32_dpp v{ACC}, v{vB}, v{ACC} quad_perm:[1,1,1,1] {DPPALL}")
    g(f"v_mul_f32_dpp v{ACC+1}, v{vB}, v{ACC+1} quad_perm:[1,1,1,1] {DPPALL}")
    g(f"v_mul_f32_dpp v{ACC+2}, v{vB}, v{ACC+2} quad_perm:[3,3,3,3] {DPPALL}")
    g(f"v_mul_f32_dpp v{ACC+3}, v{vB}, v{ACC+3} quad_perm:[3,3,3,3] {DPPALL}")
    g(f"v_cvt_pk_bf16_f32 v{D0}, v{ACC}, v{ACC+1}")
    g(f"v_cvt_pk_bf16_f32 v{D0+1}, v{ACC+2}, v{ACC+3}")
    g(f"global_store_dword v{vOut}, v{D0}, s[16:17]")
    g(f"global_store_dword v{vOut}, v{D0+1}, s[16:17] offset:256")
    if stamp:
        g("s_waitcnt vmcnt(0)")
        g("s_memrealtime s[42:43]")
        g("s_waitcnt lgkmcnt(0)")
        g(f"v_mov_b32 v{ST+2}, s42")
        g(f"v_mov_b32 v{ST+3}, s43")
        g(f"global_store_dwordx2 v{ST}, v[{ST+2}:{ST+3}], s[20:21] offset:32")
    g("s_endpgm")
    g.label("L_notw0")
    g("s_waitcnt lgkmcnt(0)")
    g("s_barrier")
    g.label("L_end")
    g("s_endpgm")

    maxv = 512 // (NW // 4)
    assert nvgpr <= min(256, maxv), nvgpr
    lds = max(lds_total, a.lds)
    nv = a.vgpr if a.vgpr else nvgpr
    nv = max(nv, nvgpr)
    out = HEADER
    out += f"; @launch grid=(256,1,1) block=({NW*64},1,1) lds={lds}\n"
    out += f""".amdgcn_target "amdgcn-amd-amdhsa--gfx950"
.text
.globl {NAME}_kernel
.p2align 8
.type {NAME}_kernel,@function
{NAME}_kernel:
"""
    out += g.text()
    out += f""".section .rodata,"a"
.p2align 6
.amdhsa_kernel {NAME}_kernel
  .amdhsa_next_free_vgpr {nv}
  .amdhsa_next_free_sgpr 64
  .amdhsa_accum_offset {(nv + 3) // 4 * 4}
  .amdhsa_group_segment_fixed_size 0
  .amdhsa_kernarg_size 72
  .amdhsa_user_sgpr_count 2
  .amdhsa_user_sgpr_kernarg_segment_ptr 1
  .amdhsa_system_sgpr_workgroup_id_x 1
.end_amdhsa_kernel
"""
    return out


if __name__ == "__main__":
    ap = argparse.ArgumentParser()
    ap.add_argument("-o", default=None)
    ap.add_argument("--ldflags", default="nt")
    ap.add_argument("--nw", type=int, default=8)
    ap.add_argument("--g", type=int, default=4)
    ap.add_argument("--interleave", type=int, default=0)
    ap.add_argument("--xcdmap", type=int, default=0)
    ap.add_argument("--finewait", type=int, default=1)
    ap.add_argument("--lds", type=int, default=90000)
    ap.add_argument("--vgpr", type=int, default=0)
    ap.add_argument("--stamp", type=int, default=0)
    a = ap.parse_args()
    s = gen(a)
    if a.o:
        open(a.o, "w").write(s)
    else:
        sys.stdout.write(s)
```

```python
import sys, argparse, struct

NAME = "standalone__tree_speculative_verify_tree_attention_over_candidate_token_tree__decode"

HEADER = """; Kernarg layout for this problem (72 bytes, ptrs only, base s[0:1]):
"""

def f32bits(x):
    return struct.unpack("<I", struct.pack("<f", x))[0]

C1 = (128 ** -0.5) * 1.4426950408889634
MASKC = -1.0e9 * 1.4426950408889634
DPPALL = "row_mask:0xf bank_mask:0xf"


class G:
    def __init__(self):
        self.l = []
    def __call__(self, s):
        self.l.append("    " + s)
    def label(self, s):
        self.l.append(s + ":")
    def text(self):
        return "\n".join(self.l) + "\n"


def r4(b):
    return f"v[{b}:{b+3}]"


def gen(a):
    NW = a.nw
    GW = a.g
    NT = 1024 // (32 * NW)
    NG = 2 * NT
    GW = min(GW, NG)
    ldf = (" " + a.ldflags) if a.ldflags else ""
    stamp = a.stamp
    g = G()
    vLane, vWave, vA, vB, vC = 1, 2, 3, 4, 5
    vK, vV = 6, 7
    Q = 8
    ACC = 12
    D0, D1 = 16, 20
    T0, T1 = 24, 25
    vM, vL, vPM = 26, 27, 28
    vAl = 29
    vOA = 30
    vE = 31
    AS = [32, 36]
    RING = 40
    def grp(n):
        return RING + 32 * (n % GW)
    nvgpr = RING + 32 * GW
    LDS_O = 0
    LDS_ML = NW * 1024
    lds_total = NW * 1024 + 2 * 4 * NW * 4
    tile_stride = (NW * 32 * 256) if a.interleave else (32 * 256)
    if a.interleave == 2:
        tile_stride = 8 * NW * 32 * 256
    wave_stride_log = 13 if a.interleave else (13 + (NT.bit_length() - 1))

    g("s_cmp_ge_u32 s2, 256")
    g("s_cbranch_scc1 L_end")
    if stamp:
        g("s_memrealtime s[40:41]")
    g("s_load_dwordx16 s[4:19], s[0:1], 0")
    g("s_load_dwordx2 s[20:21], s[0:1], 64")
    g(f"v_and_b32 v{vLane}, 63, v0")
    g(f"v_lshrrev_b32 v{vWave}, 6, v0")
    if a.xcdmap:
        g("s_and_b32 s23, s2, 7")
        g("s_lshl_b32 s23, s23, 2")
        g("s_bfe_u32 s3, s2, 0x20003")
        g("s_add_u32 s23, s23, s3")
        g("s_lshr_b32 s37, s2, 5")
    else:
        g("s_lshr_b32 s23, s2, 3")
        g("s_and_b32 s37, s2, 7")
    if a.rot == 1:
        g("s_mov_b32 s45, s37")
    elif a.rot == 2:
        g("s_mov_b32 s45, s23")
    elif a.rot == 3:
        g("s_add_u32 s45, s23, s37")
    elif a.rot == 4:
        g("s_lshr_b32 s45, s23, 2")
        g("s_add_u32 s45, s45, s23")
        g("s_add_u32 s45, s45, s37")
    g("s_lshl_b32 s38, s23, 3")
    g("s_add_u32 s38, s38, s37")
    if a.interleave == 2:
        g("s_lshl_b32 s3, s23, 21")
        g(f"s_mul_i32 s39, s37, {NW * 32 * 256}")
        g("s_add_u32 s3, s3, s39")
    else:
        g("s_lshl_b32 s3, s38, 18")
    g("s_add_u32 s3, s3, 4096")
    g(f"v_lshlrev_b32 v{vA}, {wave_stride_log}, v{vWave}")
    g(f"v_add_u32 v{vA}, s3, v{vA}")
    g(f"v_readfirstlane_b32 s22, v{vWave}")
    g(f"v_lshl_add_u32 v{vV}, v{vLane}, 4, v{vA}")
    g(f"v_bfe_u32 v{vB}, v{vLane}, 2, 2")
    g(f"v_lshl_add_u32 v{vA}, v{vB}, 8, v{vA}")
    g(f"v_lshrrev_b32 v{vC}, 4, v{vLane}")
    g(f"v_lshl_add_u32 v{vA}, v{vC}, 6, v{vA}")
    g(f"v_and_b32 v{vK}, 3, v{vLane}")
    g(f"v_lshl_add_u32 v{vK}, v{vK}, 4, v{vA}")
    g("s_lshl_b32 s24, s23, 9")
    g(f"v_lshlrev_b32 v{vC}, 6, v{vC}")
    g(f"v_lshl_add_u32 v{vC}, v{vB}, 4, v{vC}")
    g(f"v_bfe_u32 v{vA}, v{vLane}, 1, 1")
    g(f"v_lshl_add_u32 v{vA}, v{vA}, 8, v{vC}")
    g(f"v_add_u32 v{vA}, s24, v{vA}")
    g("s_waitcnt lgkmcnt(0)")
    if stamp == 2:
        g("s_memrealtime s[52:53]")
    g(f"global_load_dwordx4 {r4(Q)}, v{vA}, s[4:5]")

    vKa, vVa = vK, vV
    if a.rot:
        vKa, vVa = D0, D0 + 1
        vKa = vVa = vE
    def issue(n):
        isv = n & 1
        ar, base = (vV, "s[8:9]") if isv else (vK, "s[6:7]")
        if a.rot:
            t = n >> 1
            g(f"s_add_u32 s39, s45, {t}")
            g(f"s_and_b32 s39, s39, {NT-1}")
            g(f"s_mul_i32 s39, s39, 0x{tile_stride:x}")
            g(f"v_add_u32 v{vE}, s39, v{ar}")
            ar = vE
        for j in range(8):
            g(f"global_load_dwordx4 {r4(grp(n)+4*j)}, v{ar}, {base} offset:{j*1024-4096}{ldf}")
        if n + 2 < NG and not a.rot:
            g(f"v_add_u32 v{ar}, 0x{tile_stride:x}, v{ar}")

    for n in range(GW):
        issue(n)
    issued = GW
    if stamp == 2:
        g("s_memrealtime s[54:55]")
    g(f"s_mov_b32 s25, 0x{f32bits(C1):08x}")
    g(f"v_and_b32 v{vA}, 1, v{vLane}")
    g(f"v_lshlrev_b32 v{vA}, 4, v{vA}")
    g(f"v_mov_b32 v{vB}, 0xffff")
    g(f"v_lshlrev_b32 v{vPM}, v{vA}, v{vB}")
    for s in AS:
        for r in range(4):
            g(f"v_mov_b32 v{s+r}, 0")
    g(f"v_lshlrev_b32 v{vOA}, 4, v0")
    g(f"v_mov_b32 v{vL}, 0")

    def xreduce(op, x, y):
        g("s_nop 1")
        g(f"{op}_dpp v{y}, v{x}, v{x} row_ror:4 {DPPALL}")
        g("s_nop 1")
        g(f"{op}_dpp v{x}, v{y}, v{y} row_ror:8 {DPPALL}")
        g(f"v_mov_b32 v{y}, v{x}")
        g("s_nop 1")
        g(f"v_permlane16_swap_b32 v{x}, v{y}")
        g(f"{op} v{x}, v{x}, v{y}")
        g(f"v_mov_b32 v{y}, v{x}")
        g("s_nop 1")
        g(f"v_permlane32_swap_b32 v{x}, v{y}")
        g(f"{op} v{x}, v{x}, v{y}")

    def ror(n):
        n %= 16
        return "quad_perm:[0,1,2,3]" if n == 0 else f"row_ror:{n}"

    for t in range(NT):
        nk, nv = 2 * t, 2 * t + 1
        kb = grp(nk)
        younger = (issued - nk - 1) * 8
        for j in range(8):
            D = D0 if j % 2 == 0 else D1
            if a.finewait or j == 0:
                w = younger + (7 - j if a.finewait else 0)
                g(f"s_waitcnt vmcnt({w})")
            if stamp and t == 0 and j == 0:
                g("s_memrealtime s[46:47]")
            if stamp == 2 and j == 7:
                g(f"s_memrealtime s[{56+2*nk}:{57+2*nk}]")
            g(f"v_mfma_f32_16x16x32_bf16 {r4(D)}, {r4(kb+4*j)}, {r4(Q)}, 0")
            if j >= 1:
                jp = j - 1
                Dp = D0 if jp % 2 == 0 else D1
                q = jp & 3
                T = T0 if jp < 4 else T1
                x, y, z, w_ = [Dp + ((q + i) % 4) for i in range(4)]
                g("s_nop 6")
                g(f"v_add_f32_dpp v{vA}, v{y}, v{x} row_ror:12 {DPPALL}")
                g(f"v_add_f32_dpp v{vB}, v{w_}, v{z} row_ror:12 {DPPALL}")
                g("s_nop 1")
                g(f"v_add_f32_dpp v{T}, v{vB}, v{vA} row_ror:8 row_mask:0xf bank_mask:0x{1<<q:x}")
        if issued < NG:
            issue(issued)
            issued += 1
        else:
            g("s_nop 4")
        Dp = D1
        q = 3
        x, y, z, w_ = [Dp + ((q + i) % 4) for i in range(4)]
        g(f"v_add_f32_dpp v{vA}, v{y}, v{x} row_ror:12 {DPPALL}")
        g(f"v_add_f32_dpp v{vB}, v{w_}, v{z} row_ror:12 {DPPALL}")
        g("s_nop 1")
        g(f"v_add_f32_dpp v{T1}, v{vB}, v{vA} row_ror:8 row_mask:0xf bank_mask:0x{1<<q:x}")
        g(f"v_max_f32 v{vA}, v{T0}, v{T1}")
        xreduce("v_max_f32", vA, vB)
        g(f"v_mul_f32 v{vA}, s25, v{vA}")
        if t == 0:
            g(f"v_mov_b32 v{vM}, v{vA}")
        else:
            g(f"v_max_f32 v{vA}, v{vA}, v{vM}")
            g(f"v_sub_f32 v{vAl}, v{vM}, v{vA}")
            g(f"v_mov_b32 v{vM}, v{vA}")
            g(f"v_exp_f32 v{vAl}, v{vAl}")
        g(f"v_fma_f32 v{T0}, v{T0}, s25, -v{vM}")
        g(f"v_fma_f32 v{T1}, v{T1}, s25, -v{vM}")
        g(f"v_exp_f32 v{T0}, v{T0}")
        g(f"v_exp_f32 v{T1}, v{T1}")
        if t > 0:
            g(f"v_mul_f32 v{vL}, v{vL}, v{vAl}")
            for r in range(4):
                qp = "[0,0,0,0]" if r < 2 else "[2,2,2,2]"
                g(f"v_mul_f32_dpp v{ACC+r}, v{vAl}, v{ACC+r} quad_perm:{qp} {DPPALL}")
        else:
            g("s_nop 0")
        g(f"v_cvt_pk_bf16_f32 v{T0}, v{T0}, v{T0}")
        g(f"v_cvt_pk_bf16_f32 v{T1}, v{T1}, v{T1}")
        g(f"v_and_b32 v{T0}, v{T0}, v{vPM}")
        g(f"v_and_b32 v{T1}, v{T1}, v{vPM}")
        g(f"v_add_f32 v{vL}, v{vL}, v{T0}")
        g(f"v_add_f32 v{vL}, v{vL}, v{T1}")
        if t == NT - 1:
            xreduce("v_add_f32", vL, vB)
            g(f"v_and_b32 v{vA}, 3, v{vLane}")
            g(f"v_mul_u32_u24 v{vA}, {4*NW}, v{vA}")
            g(f"v_lshl_add_u32 v{vB}, v{vWave}, 2, v{vA}")
            g(f"ds_write_b32 v{vB}, v{vM} offset:{LDS_ML}")
            g(f"ds_write_b32 v{vB}, v{vL} offset:{LDS_ML+16*NW}")
            g(f"v_mov_b32 v{vE}, v{vA}")
        vb = grp(nv)
        younger = (issued - nv - 1) * 8
        for j in range(8):
            A = AS[j % 2]
            T = T0 if j < 4 else T1
            q = j & 3
            for r in range(4):
                g(f"v_mov_b32_dpp v{A+r}, v{T} {ror(4*(r-q))} row_mask:0xf bank_mask:0x{1<<r:x}")
            if a.finewait or j == 0:
                w = younger + (7 - j if a.finewait else 0)
                g(f"s_waitcnt vmcnt({w})")
                g("s_nop 0")
            else:
                g("s_nop 1")
            c = "0" if (t == 0 and j == 0) else r4(ACC)
            if stamp == 2 and j == 7:
                g(f"s_memrealtime s[{56+2*nv}:{57+2*nv}]")
            g(f"v_mfma_f32_16x16x32_bf16 {r4(ACC)}, {r4(A)}, {r4(vb+4*j)}, {c}")
        if issued < NG:
            issue(issued)
            issued += 1
    g("s_nop 7")
    g(f"ds_write_b128 v{vOA}, {r4(ACC)} offset:{LDS_O}")
    if stamp == 2:
        g("s_waitcnt lgkmcnt(0)")
        g(f"s_mul_i32 s44, s2, {NW}")
        g("s_add_u32 s44, s44, s22")
        g("s_lshl_b32 s44, s44, 7")
        g("s_add_u32 s44, s44, 0x200000")
        g(f"v_mov_b32 v{vA}, s44")
        srcs = [40, 52, 54, 46] + [56 + 2 * n for n in range(NG)]
        for i, sr in enumerate(srcs):
            g(f"v_mov_b32 v{vB}, s{sr}")
            g(f"global_store_dword v{vA}, v{vB}, s[20:21] offset:{4*i}")
    g("s_cmp_lg_u32 s22, 0")
    g("s_cbranch_scc1 L_notw0")
    R = RING
    need = 4 * max(NW, 8) + 2 * max(NW, 8) + 24
    nvgpr = max(nvgpr, R + need + (16 if stamp else 0))
    MS = R + 4 * max(NW, 8)
    LS = MS + max(NW, 8)
    X = LS + max(NW, 8)
    vKT, vVT, vMt, vRec, vRec2, vOut = X, X + 4, X + 5, X + 6, X + 7, X + 8
    vVT0, vVT1 = X + 9, X + 10
    vML = X + 12
    ST = X + 24
    g("s_lshl_b32 s26, s23, 8")
    g(f"v_lshrrev_b32 v{vA}, 4, v{vLane}")
    g(f"v_lshlrev_b32 v{vB}, 6, v{vA}")
    g(f"v_and_b32 v{vC}, 3, v{vLane}")
    g(f"v_lshl_add_u32 v{vB}, v{vC}, 4, v{vB}")
    g(f"v_add_u32 v{vB}, s26, v{vB}")
    g(f"global_load_dwordx4 {r4(vKT)}, v{vB}, s[10:11]")
    g(f"v_and_b32 v{vC}, 15, v{vLane}")
    g(f"v_lshlrev_b32 v{vC}, 4, v{vC}")
    g(f"v_lshl_add_u32 v{vOut}, v{vA}, 2, v{vC}")
    g(f"v_add_u32 v{vC}, s26, v{vOut}")
    g(f"global_load_dword v{vVT}, v{vC}, s[12:13]")
    g("s_load_dword s27, s[14:15], 0")
    g(f"v_add_u32 v{vOut}, s24, v{vOut}")
    g("s_lshl_b32 s32, s38, 11")
    g(f"v_lshlrev_b32 v{vRec}, 4, v{vLane}")
    g(f"v_lshlrev_b32 v{vRec2}, 3, v{vLane}")
    g("s_waitcnt lgkmcnt(0)")
    g("s_barrier")
    if stamp:
        g("s_memrealtime s[48:49]")
    for i in range(NW // 4):
        g(f"ds_read_b128 {r4(MS+4*i)}, v{vE} offset:{LDS_ML+16*i}")
    for i in range(NW // 4):
        g(f"ds_read_b128 {r4(LS+4*i)}, v{vE} offset:{LDS_ML+16*NW+16*i}")
    for w in range(NW):
        g(f"ds_read_b128 {r4(R+4*w)}, v{vRec} offset:{LDS_O+1024*w}")
    g(f"v_add_u32 v{vRec}, s32, v{vRec}")
    g(f"v_add_u32 v{vRec2}, s32, v{vRec2}")
    g(f"s_waitcnt lgkmcnt({min(15, NW + NW // 4)})")

    def combine(n, Mx, Lx, Ox, strideML, waitfn, extra=None):
        ms = [Mx + strideML * i for i in range(n)]
        ls = [Lx + strideML * i for i in range(n)]
        lst = ms + ([extra] if extra is not None else [])
        g(f"v_max3_f32 v{vA}, v{lst[0]}, v{lst[1]}, v{lst[2]}")
        k = 3
        while k < len(lst):
            if k + 1 < len(lst):
                g(f"v_max3_f32 v{vA}, v{vA}, v{lst[k]}, v{lst[k+1]}")
                k += 2
            else:
                g(f"v_max_f32 v{vA}, v{vA}, v{lst[k]}")
                k += 1
        for m in lst:
            g(f"v_sub_f32 v{m}, v{m}, v{vA}")
        for m in lst:
            g(f"v_exp_f32 v{m}, v{m}")
        waitfn(-1)
        if extra is not None:
            g(f"v_fma_f32 v{vB}, v{ms[0]}, v{ls[0]}, v{extra}")
        else:
            g(f"v_mul_f32 v{vB}, v{ms[0]}, v{ls[0]}")
        for i in range(1, n):
            g(f"v_fmac_f32 v{vB}, v{ms[i]}, v{ls[i]}")
        for i in range(n):
            waitfn(i)
            for r in range(4):
                qp = "[0,0,0,0]" if r < 2 else "[2,2,2,2]"
                if i == 0 and extra is None:
                    g(f"v_mul_f32_dpp v{ACC+r}, v{ms[i]}, v{Ox+4*i+r} quad_perm:{qp} {DPPALL}")
                else:
                    g(f"v_fmac_f32_dpp v{ACC+r}, v{ms[i]}, v{Ox+4*i+r} quad_perm:{qp} {DPPALL}")

    def w1(i):
        if i == -1:
            g(f"s_waitcnt lgkmcnt({min(15, NW)})")
        else:
            g(f"s_waitcnt lgkmcnt({min(15, NW-1-i)})")
    combine(NW, MS, LS, R, 1, w1)
    g(f"global_store_dwordx4 v{vRec}, {r4(ACC)}, s[20:21] sc1")
    g(f"v_mov_b32 v{vML}, v{vA}")
    g(f"v_mov_b32 v{vML+1}, v{vB}")
    g(f"global_store_dwordx2 v{vRec2}, v[{vML}:{vML+1}], s[20:21] offset:1024 sc1")
    g("s_waitcnt vmcnt(2)")
    g(f"v_mfma_f32_16x16x32_bf16 {r4(D0)}, {r4(vKT)}, {r4(Q)}, 0")
    g(f"v_lshlrev_b32 v{vVT0}, 16, v{vVT}")
    g(f"v_and_b32 v{vVT1}, 0xffff0000, v{vVT}")
    g("s_lshr_b32 s33, s23, 4")
    g("s_lshl_b32 s33, s33, 4")
    g("s_lshr_b32 s27, s27, s33")
    g("s_lshl_b32 s27, s27, 16")
    g("s_nop 3")
    g(f"v_add_f32_dpp v{vA}, v{D0+1}, v{D0} row_ror:12 {DPPALL}")
    g(f"v_add_f32_dpp v{vB}, v{D0+3}, v{D0+2} row_ror:12 {DPPALL}")
    g("s_nop 1")
    g(f"v_add_f32_dpp v{vA}, v{vB}, v{vA} row_ror:8 {DPPALL}")
    g("s_nop 1")
    g(f"v_mov_b32_dpp v{vMt}, v{vA} quad_perm:[0,1,2,3] row_mask:0xf bank_mask:0x1")
    g("s_nop 1")
    g(f"v_mov_b32_dpp v{vMt}, v{vA} row_ror:4 row_mask:0xf bank_mask:0x2")
    g("s_nop 1")
    g(f"v_mov_b32_dpp v{vMt}, v{vA} row_ror:8 row_mask:0xf bank_mask:0x4")
    g("s_nop 1")
    g(f"v_mov_b32_dpp v{vMt}, v{vA} row_ror:12 row_mask:0xf bank_mask:0x8")
    g(f"v_sub_f32 v{vB}, 1.0, s27")
    g(f"v_mul_f32 v{vB}, 0x{f32bits(MASKC):08x}, v{vB}")
    g(f"v_fma_f32 v{vMt}, v{vMt}, s25, v{vB}")
    g("s_lshl_b32 s34, s23, 2")
    g(f"v_mov_b32 v{vA}, s34")
    g(f"v_mov_b32 v{vB}, 1")
    g("s_mov_b64 exec, 1")
    g("s_waitcnt vmcnt(0)")
    g(f"global_atomic_add v{vB}, v{vA}, v{vB}, s[18:19] sc0")
    g("s_lshl_b32 s35, s23, 14")
    g("s_add_u32 s35, s35, 4096")
    g("s_waitcnt vmcnt(0)")
    g(f"v_readfirstlane_b32 s36, v{vB}")
    g("s_mov_b64 exec, -1")
    if stamp:
        g("s_memrealtime s[42:43]")
        g("s_lshl_b32 s44, s2, 6")
        g("s_add_u32 s44, s44, 0x100000")
        g(f"v_mov_b32 v{ST}, s44")
        g("s_getreg_b32 s50, hwreg(HW_REG_XCC_ID)")
        g("s_getreg_b32 s51, hwreg(HW_REG_HW_ID)")
        g("s_waitcnt lgkmcnt(0)")
        for i, sr in enumerate([40, 41, 46, 47, 48, 49, 42, 43, 50, 51]):
            g(f"v_mov_b32 v{ST+2+i}, s{sr}")
        g(f"global_store_dwordx4 v{ST}, {r4(ST+2)}, s[20:21]")
        g(f"global_store_dwordx4 v{ST}, {r4(ST+6)}, s[20:21] offset:16")
        g(f"global_store_dwordx2 v{ST}, v[{ST+10}:{ST+11}], s[20:21] offset:40")
    g("s_cmp_lg_u32 s36, 7")
    g("s_cbranch_scc1 L_end")
    g(f"v_lshlrev_b32 v{vRec}, 4, v{vLane}")
    g(f"v_add_u32 v{vRec}, s35, v{vRec}")
    g(f"v_lshlrev_b32 v{vRec2}, 3, v{vLane}")
    g(f"v_add_u32 v{vRec2}, s35, v{vRec2}")
    g(f"v_add_u32 v{vC}, 0x2000, v{vRec}")
    g(f"v_add_u32 v{vE}, 0x2000, v{vRec2}")
    for s in range(8):
        ad = vRec2 if s < 4 else vE
        off = (s % 4) * 2048 - 4096 + 1024
        g(f"global_load_dwordx2 v[{MS+2*s}:{MS+2*s+1}], v{ad}, s[20:21] offset:{off} sc1")
    for s in range(8):
        ad = vRec if s < 4 else vC
        off = (s % 4) * 2048 - 4096
        g(f"global_load_dwordx4 {r4(R+4*s)}, v{ad}, s[20:21] offset:{off} sc1")
    g("s_waitcnt vmcnt(8)")
    def w2(i):
        if i == -1:
            g("s_nop 1")
            g(f"v_mul_f32_dpp v{ACC}, v{vMt}, v{vVT0} quad_perm:[0,0,0,0] {DPPALL}")
            g(f"v_mul_f32_dpp v{ACC+1}, v{vMt}, v{vVT1} quad_perm:[0,0,0,0] {DPPALL}")
            g(f"v_mul_f32_dpp v{ACC+2}, v{vMt}, v{vVT0} quad_perm:[2,2,2,2] {DPPALL}")
            g(f"v_mul_f32_dpp v{ACC+3}, v{vMt}, v{vVT1} quad_perm:[2,2,2,2] {DPPALL}")
        else:
            g(f"s_waitcnt vmcnt({7-i})")
            if i == 0:
                g(f"v_rcp_f32 v{vB}, v{vB}")
    combine(8, MS, MS + 1, R, 2, w2, extra=vMt)
    g("s_nop 1")
    g(f"v_mul_f32_dpp v{ACC}, v{vB}, v{ACC} quad_perm:[1,1,1,1] {DPPALL}")
    g(f"v_mul_f32_dpp v{ACC+1}, v{vB}, v{ACC+1} quad_perm:[1,1,1,1] {DPPALL}")
    g(f"v_mul_f32_dpp v{ACC+2}, v{vB}, v{ACC+2} quad_perm:[3,3,3,3] {DPPALL}")
    g(f"v_mul_f32_dpp v{ACC+3}, v{vB}, v{ACC+3} quad_perm:[3,3,3,3] {DPPALL}")
    g(f"v_cvt_pk_bf16_f32 v{D0}, v{ACC}, v{ACC+1}")
    g(f"v_cvt_pk_bf16_f32 v{D0+1}, v{ACC+2}, v{ACC+3}")
    g(f"global_store_dword v{vOut}, v{D0}, s[16:17]")
    g(f"global_store_dword v{vOut}, v{D0+1}, s[16:17] offset:256")
    if stamp:
        g("s_waitcnt vmcnt(0)")
        g("s_memrealtime s[42:43]")
        g("s_waitcnt lgkmcnt(0)")
        g(f"v_mov_b32 v{ST+2}, s42")
        g(f"v_mov_b32 v{ST+3}, s43")
        g(f"global_store_dwordx2 v{ST}, v[{ST+2}:{ST+3}], s[20:21] offset:32")
    g("s_endpgm")
    g.label("L_notw0")
    g("s_waitcnt lgkmcnt(0)")
    g("s_barrier")
    g.label("L_end")
    g("s_endpgm")

    maxv = 512 // (NW // 4)
    assert nvgpr <= min(256, maxv), nvgpr
    lds = max(lds_total, a.lds)
    nv = a.vgpr if a.vgpr else nvgpr
    nv = max(nv, nvgpr)
    out = HEADER
    out += f"; @launch grid=(256,1,1) block=({NW*64},1,1) lds={lds}\n"
    out += f""".amdgcn_target "amdgcn-amd-amdhsa--gfx950"
.text
.globl {NAME}_kernel
.p2align 8
.type {NAME}_kernel,@function
{NAME}_kernel:
"""
    out += g.text()
    out += f""".section .rodata,"a"
.p2align 6
.amdhsa_kernel {NAME}_kernel
  .amdhsa_next_free_vgpr {nv}
  .amdhsa_next_free_sgpr 96
  .amdhsa_accum_offset {(nv + 3) // 4 * 4}
  .amdhsa_group_segment_fixed_size 0
  .amdhsa_kernarg_size 72
  .amdhsa_user_sgpr_count 2
  .amdhsa_user_sgpr_kernarg_segment_ptr 1
  .amdhsa_system_sgpr_workgroup_id_x 1
.end_amdhsa_kernel
"""
    return out


if __name__ == "__main__":
    ap = argparse.ArgumentParser()
    ap.add_argument("-o", default=None)
    ap.add_argument("--ldflags", default="nt")
    ap.add_argument("--nw", type=int, default=8)
    ap.add_argument("--g", type=int, default=4)
    ap.add_argument("--interleave", type=int, default=0)
    ap.add_argument("--xcdmap", type=int, default=0)
    ap.add_argument("--finewait", type=int, default=1)
    ap.add_argument("--lds", type=int, default=90000)
    ap.add_argument("--vgpr", type=int, default=0)
    ap.add_argument("--stamp", type=int, default=0)
    ap.add_argument("--rot", type=int, default=0)
    a = ap.parse_args()
    s = gen(a)
    if a.o:
        open(a.o, "w").write(s)
    else:
        sys.stdout.write(s)
```

```python
import sys, argparse, struct

NAME = "standalone__tree_speculative_verify_tree_attention_over_candidate_token_tree__decode"

HEADER = """; Kernarg layout for this problem (72 bytes, ptrs only, base s[0:1]):
"""

def f32bits(x):
    return struct.unpack("<I", struct.pack("<f", x))[0]

C1 = (128 ** -0.5) * 1.4426950408889634
MASKC = -1.0e9 * 1.4426950408889634
DPPALL = "row_mask:0xf bank_mask:0xf"


class G:
    def __init__(self):
        self.l = []
    def __call__(self, s):
        self.l.append("    " + s)
    def label(self, s):
        self.l.append(s + ":")
    def text(self):
        return "\n".join(self.l) + "\n"


def r4(b):
    return f"v[{b}:{b+3}]"


def gen(a):
    NW = a.nw
    LNW = NW.bit_length() - 1
    CW = a.cw if a.cw >= 0 else NW - 1
    ldf = (" " + a.ldflags) if a.ldflags else ""
    stamp = a.stamp
    counts = [int(x) for x in a.counts.split(",")]
    assert len(counts) == 8 and sum(counts) == 256 and min(counts) >= 2 * NW
    starts = [sum(counts[:i]) for i in range(8)]
    g = G()
    vLane, vWave, vA, vB, vC = 1, 2, 3, 4, 5
    vK, vV = 6, 7
    Q = 8
    ACC = 12
    D0, D1 = 16, 20
    T0, T1 = 24, 25
    vM, vL, vPM = 26, 27, 28
    vAl = 29
    vOA = 30
    vE = 31
    AS = [32, 36]
    KR, VR = 40, 72
    vMt, vVT0, vVT1, vTkA, vTk, vRec, vRec2, vOut = 104, 105, 106, 107, 108, 109, 110, 111
    vML = 112
    RO = 116
    RM = RO + 32
    ST = RM + 16
    nvgpr = ST + (16 if stamp else 0)
    LO = KR
    MS = VR
    LS = VR + 16
    LDS_O = 0
    LDS_ML = NW * 1024
    lds_total = NW * 1024 + 2 * 4 * NW * 4
    tile_stride = NW * 8192

    def pack(vals):
        lo = sum(v << (8 * i) for i, v in enumerate(vals[:4]))
        hi = sum(v << (8 * i) for i, v in enumerate(vals[4:]))
        return lo, hi

    g("s_cmp_ge_u32 s2, 256")
    g("s_cbranch_scc1 L_end")
    if stamp:
        g("s_memrealtime s[60:61]")
    g("s_load_dwordx16 s[4:19], s[0:1], 0")
    g("s_load_dwordx2 s[20:21], s[0:1], 64")
    g(f"v_and_b32 v{vLane}, 63, v0")
    g(f"v_lshrrev_b32 v{vWave}, 6, v0")
    if a.xcdmap == 1:
        g("s_and_b32 s23, s2, 7")
        g("s_lshl_b32 s23, s23, 2")
        g("s_bfe_u32 s3, s2, 0x20003")
        g("s_add_u32 s23, s23, s3")
        g("s_lshr_b32 s37, s2, 5")
    elif a.xcdmap == 2:
        g("s_bfe_u32 s23, s2, 0x20001")
        g("s_lshl_b32 s23, s23, 3")
        g("s_bfe_u32 s3, s2, 0x30003")
        g("s_add_u32 s23, s23, s3")
        g("s_lshr_b32 s37, s2, 6")
        g("s_lshl_b32 s37, s37, 1")
        g("s_and_b32 s3, s2, 1")
        g("s_add_u32 s37, s37, s3")
    else:
        g("s_lshr_b32 s23, s2, 3")
        g("s_and_b32 s37, s2, 7")
    g(f"v_readfirstlane_b32 s22, v{vWave}")
    uniform = all(c == 32 for c in counts)
    if uniform:
        g("s_lshl_b32 s30, s37, 5")
        g("s_mov_b32 s31, 32")
    else:
        lo, hi = pack(starts)
        g(f"s_mov_b32 s28, 0x{lo:08x}")
        g(f"s_mov_b32 s29, 0x{hi:08x}")
        g("s_lshl_b32 s3, s37, 3")
        g("s_lshr_b64 s[30:31], s[28:29], s3")
        g("s_and_b32 s30, s30, 0xff")
        lo, hi = pack(counts)
        g(f"s_mov_b32 s28, 0x{lo:08x}")
        g(f"s_mov_b32 s29, 0x{hi:08x}")
        g("s_lshr_b64 s[28:29], s[28:29], s3")
        g("s_and_b32 s31, s28, 0xff")
    g("s_lshl_b32 s38, s23, 3")
    g("s_add_u32 s38, s38, s37")
    g("s_lshl_b32 s3, s23, 8")
    g("s_add_u32 s3, s3, s30")
    g("s_lshl_b32 s3, s3, 13")
    g("s_add_u32 s3, s3, 4096")
    g(f"v_lshlrev_b32 v{vA}, 13, v{vWave}")
    g(f"v_add_u32 v{vA}, s3, v{vA}")
    g(f"v_lshl_add_u32 v{vV}, v{vLane}, 4, v{vA}")
    g(f"v_bfe_u32 v{vB}, v{vLane}, 2, 2")
    g(f"v_lshl_add_u32 v{vA}, v{vB}, 8, v{vA}")
    g(f"v_lshrrev_b32 v{vC}, 4, v{vLane}")
    g(f"v_lshl_add_u32 v{vA}, v{vC}, 6, v{vA}")
    g(f"v_and_b32 v{vK}, 3, v{vLane}")
    g(f"v_lshl_add_u32 v{vK}, v{vK}, 4, v{vA}")
    g("s_lshl_b32 s24, s23, 9")
    g(f"v_lshlrev_b32 v{vC}, 6, v{vC}")
    g(f"v_lshl_add_u32 v{vC}, v{vB}, 4, v{vC}")
    g(f"v_bfe_u32 v{vA}, v{vLane}, 1, 1")
    g(f"v_lshl_add_u32 v{vA}, v{vA}, 8, v{vC}")
    g(f"v_add_u32 v{vA}, s24, v{vA}")
    g("s_sub_u32 s40, s31, s22")
    g("s_sub_u32 s40, s40, 1")
    g(f"s_lshr_b32 s40, s40, {LNW}")
    g(f"s_cmp_eq_u32 s22, {CW}")
    g("s_cselect_b32 s41, 1, 0")
    g("s_waitcnt lgkmcnt(0)")
    g(f"global_load_dwordx4 {r4(Q)}, v{vA}, s[4:5]")

    def issue(isv, adv=True):
        ar, base, rb = (vV, "s[8:9]", VR) if isv else (vK, "s[6:7]", KR)
        for j in range(8):
            g(f"global_load_dwordx4 {r4(rb+4*j)}, v{ar}, {base} offset:{j*1024-4096}{ldf}")
        if adv:
            g(f"v_add_u32 v{ar}, 0x{tile_stride:x}, v{ar}")

    g("s_cbranch_scc0 L_nocw0")
    g("s_lshl_b32 s26, s23, 8")
    g(f"v_lshrrev_b32 v{vA}, 4, v{vLane}")
    g(f"v_lshlrev_b32 v{vB}, 6, v{vA}")
    g(f"v_and_b32 v{vC}, 3, v{vLane}")
    g(f"v_lshl_add_u32 v{vB}, v{vC}, 4, v{vB}")
    g(f"v_add_u32 v{vB}, s26, v{vB}")
    g(f"global_load_dwordx4 {r4(D1)}, v{vB}, s[10:11]")
    g(f"v_lshlrev_b32 v{vRec2}, 3, v{vC}")
    g(f"v_and_b32 v{vC}, 15, v{vLane}")
    g(f"v_lshlrev_b32 v{vC}, 4, v{vC}")
    g(f"v_lshl_add_u32 v{vOut}, v{vA}, 2, v{vC}")
    g(f"v_add_u32 v{vC}, s26, v{vOut}")
    g(f"global_load_dword v{vVT1}, v{vC}, s[12:13]")
    g("s_load_dword s27, s[14:15], 0")
    g(f"v_add_u32 v{vOut}, s24, v{vOut}")
    g("s_lshl_b32 s32, s38, 11")
    g(f"v_lshlrev_b32 v{vRec}, 4, v{vLane}")
    g(f"v_add_u32 v{vRec}, s32, v{vRec}")
    g(f"v_add_u32 v{vRec2}, s32, v{vRec2}")
    g(f"s_lshl_b32 s34, s23, {a.tkshift}")
    g(f"v_mov_b32 v{vTkA}, s34")
    g(f"v_mov_b32 v{vTk}, 1")
    if a.hand == 1:
        for r in range(4):
            g(f"v_mov_b32 v{RO+r}, -1")
        g(f"global_store_dwordx4 v{vRec}, {r4(RO)}, s[20:21] sc1")
        g("s_mov_b64 exec, 15")
        g(f"global_store_dwordx2 v{vRec2}, v[{RO}:{RO+1}], s[20:21] offset:1024 sc1")
        g("s_mov_b64 exec, -1")
    g.label("L_nocw0")
    issue(0)
    issue(1)
    g(f"s_mov_b32 s25, 0x{f32bits(C1):08x}")
    g(f"v_and_b32 v{vA}, 1, v{vLane}")
    g(f"v_lshlrev_b32 v{vA}, 4, v{vA}")
    g(f"v_mov_b32 v{vB}, 0xffff")
    g(f"v_lshlrev_b32 v{vPM}, v{vA}, v{vB}")
    for s in AS:
        for r in range(4):
            g(f"v_mov_b32 v{s+r}, 0")
    for r in range(4):
        g(f"v_mov_b32 v{ACC+r}, 0")
    g(f"v_lshlrev_b32 v{vOA}, 4, v0")
    g(f"v_mov_b32 v{vL}, 0")
    g(f"v_mov_b32 v{vM}, 0xff7fffff")
    g(f"v_and_b32 v{vE}, 3, v{vLane}")
    g(f"v_mul_u32_u24 v{vE}, {4*NW}, v{vE}")
    g("s_cmp_lg_u32 s41, 0")
    g("s_cbranch_scc0 L_loop")
    g("s_waitcnt vmcnt(16) lgkmcnt(0)")
    g(f"v_mfma_f32_16x16x32_bf16 {r4(D0)}, {r4(D1)}, {r4(Q)}, 0")
    g(f"v_lshlrev_b32 v{vVT0}, 16, v{vVT1}")
    g(f"v_and_b32 v{vVT1}, 0xffff0000, v{vVT1}")
    g("s_lshr_b32 s33, s23, 4")
    g("s_lshl_b32 s33, s33, 4")
    g("s_lshr_b32 s27, s27, s33")
    g("s_lshl_b32 s27, s27, 16")
    g("s_nop 3")
    g(f"v_add_f32_dpp v{vA}, v{D0+1}, v{D0} row_ror:12 {DPPALL}")
    g(f"v_add_f32_dpp v{vB}, v{D0+3}, v{D0+2} row_ror:12 {DPPALL}")
    g("s_nop 1")
    g(f"v_add_f32_dpp v{vA}, v{vB}, v{vA} row_ror:8 {DPPALL}")
    g("s_nop 1")
    g(f"v_mov_b32_dpp v{vMt}, v{vA} quad_perm:[0,1,2,3] row_mask:0xf bank_mask:0x1")
    g("s_nop 1")
    g(f"v_mov_b32_dpp v{vMt}, v{vA} row_ror:4 row_mask:0xf bank_mask:0x2")
    g("s_nop 1")
    g(f"v_mov_b32_dpp v{vMt}, v{vA} row_ror:8 row_mask:0xf bank_mask:0x4")
    g("s_nop 1")
    g(f"v_mov_b32_dpp v{vMt}, v{vA} row_ror:12 row_mask:0xf bank_mask:0x8")
    g(f"v_sub_f32 v{vB}, 1.0, s27")
    g(f"v_mul_f32 v{vB}, 0x{f32bits(MASKC):08x}, v{vB}")
    g(f"v_fma_f32 v{vMt}, v{vMt}, s25, v{vB}")
    if stamp:
        g("s_waitcnt vmcnt(15)")
        g("s_memrealtime s[62:63]")

    def xreduce(op, x, y):
        g("s_nop 1")
        g(f"{op}_dpp v{y}, v{x}, v{x} row_ror:4 {DPPALL}")
        g("s_nop 1")
        g(f"{op}_dpp v{x}, v{y}, v{y} row_ror:8 {DPPALL}")
        g(f"v_mov_b32 v{y}, v{x}")
        g("s_nop 1")
        g(f"v_permlane16_swap_b32 v{x}, v{y}")
        g(f"{op} v{x}, v{x}, v{y}")
        g(f"v_mov_b32 v{y}, v{x}")
        g("s_nop 1")
        g(f"v_permlane32_swap_b32 v{x}, v{y}")
        g(f"{op} v{x}, v{x}, v{y}")

    def ror(n):
        n %= 16
        return "quad_perm:[0,1,2,3]" if n == 0 else f"row_ror:{n}"

    def qk(younger, nxt):
        for j in range(8):
            D = D0 if j % 2 == 0 else D1
            g(f"s_waitcnt vmcnt({younger + 7 - j})")
            g(f"v_mfma_f32_16x16x32_bf16 {r4(D)}, {r4(KR+4*j)}, {r4(Q)}, 0")
            if j >= 1:
                jp = j - 1
                Dp = D0 if jp % 2 == 0 else D1
                q = jp & 3
                T = T0 if jp < 4 else T1
                x, y, z, w_ = [Dp + ((q + i) % 4) for i in range(4)]
                g("s_nop 6")
                g(f"v_add_f32_dpp v{vA}, v{y}, v{x} row_ror:12 {DPPALL}")
                g(f"v_add_f32_dpp v{vB}, v{w_}, v{z} row_ror:12 {DPPALL}")
                g("s_nop 1")
                g(f"v_add_f32_dpp v{T}, v{vB}, v{vA} row_ror:8 row_mask:0xf bank_mask:0x{1<<q:x}")
        if nxt:
            issue(0)
        else:
            g("s_nop 4")
        Dp = D1
        q = 3
        x, y, z, w_ = [Dp + ((q + i) % 4) for i in range(4)]
        g(f"v_add_f32_dpp v{vA}, v{y}, v{x} row_ror:12 {DPPALL}")
        g(f"v_add_f32_dpp v{vB}, v{w_}, v{z} row_ror:12 {DPPALL}")
        g("s_nop 1")
        g(f"v_add_f32_dpp v{T1}, v{vB}, v{vA} row_ror:8 row_mask:0xf bank_mask:0x{1<<q:x}")

    def softmax(last):
        g(f"v_max_f32 v{vA}, v{T0}, v{T1}")
        xreduce("v_max_f32", vA, vB)
        g(f"v_mul_f32 v{vA}, s25, v{vA}")
        g(f"v_max_f32 v{vA}, v{vA}, v{vM}")
        g(f"v_sub_f32 v{vAl}, v{vM}, v{vA}")
        g(f"v_mov_b32 v{vM}, v{vA}")
        g(f"v_exp_f32 v{vAl}, v{vAl}")
        g(f"v_fma_f32 v{T0}, v{T0}, s25, -v{vM}")
        g(f"v_fma_f32 v{T1}, v{T1}, s25, -v{vM}")
        g(f"v_exp_f32 v{T0}, v{T0}")
        g(f"v_exp_f32 v{T1}, v{T1}")
        g(f"v_mul_f32 v{vL}, v{vL}, v{vAl}")
        for r in range(4):
            qp = "[0,0,0,0]" if r < 2 else "[2,2,2,2]"
            g(f"v_mul_f32_dpp v{ACC+r}, v{vAl}, v{ACC+r} quad_perm:{qp} {DPPALL}")
        g(f"v_cvt_pk_bf16_f32 v{T0}, v{T0}, v{T0}")
        g(f"v_cvt_pk_bf16_f32 v{T1}, v{T1}, v{T1}")
        g(f"v_and_b32 v{T0}, v{T0}, v{vPM}")
        g(f"v_and_b32 v{T1}, v{T1}, v{vPM}")
        g(f"v_add_f32 v{vL}, v{vL}, v{T0}")
        g(f"v_add_f32 v{vL}, v{vL}, v{T1}")
        if last:
            xreduce("v_add_f32", vL, vB)
            g(f"v_lshl_add_u32 v{vB}, v{vWave}, 2, v{vE}")
            g(f"ds_write_b32 v{vB}, v{vM} offset:{LDS_ML}")
            g(f"ds_write_b32 v{vB}, v{vL} offset:{LDS_ML+16*NW}")

    def pv(younger):
        for j in range(8):
            A = AS[j % 2]
            T = T0 if j < 4 else T1
            q = j & 3
            for r in range(4):
                g(f"v_mov_b32_dpp v{A+r}, v{T} {ror(4*(r-q))} row_mask:0xf bank_mask:0x{1<<r:x}")
            g(f"s_waitcnt vmcnt({younger + 7 - j})")
            g("s_nop 0")
            g(f"v_mfma_f32_16x16x32_bf16 {r4(ACC)}, {r4(A)}, {r4(VR+4*j)}, {r4(ACC)}")

    def ticket():
        g("s_mov_b64 exec, 1")
        g(f"global_atomic_add v{vTk}, v{vTkA}, v{vTk}, s[18:19] sc0")
        g("s_mov_b64 exec, -1")

    g.label("L_loop")
    qk(8, True)
    softmax(False)
    pv(8)
    if a.hand == 1:
        g("s_cmp_eq_u32 s40, s41")
        g("s_cbranch_scc0 L_notk")
        ticket()
        g.label("L_notk")
    issue(1)
    g("s_sub_u32 s40, s40, 1")
    g("s_cmp_lg_u32 s40, 0")
    g("s_cbranch_scc1 L_loop")

    def finish_wave():
        g("s_nop 7")
        g(f"ds_write_b128 v{vOA}, {r4(ACC)} offset:{LDS_O}")

    def polls():
        for i in range(1, 8):
            g(f"v_xor_b32 v{vA}, {i*2048}, v{vRec2}")
            g(f"global_load_dwordx2 v[{RM+2*(i-1)}:{RM+2*(i-1)+1}], v{vA}, s[20:21] offset:1024 sc1")
        for i in range(1, 8):
            g(f"v_xor_b32 v{vA}, {i*2048}, v{vRec}")
            g(f"global_load_dwordx4 {r4(RO+4*(i-1))}, v{vA}, s[20:21] sc1")

    def combine(ms, ls, os_, waitfn, extra=None, own=False):
        n = len(ms)
        lst = list(ms) + ([extra] if extra is not None else [])
        g(f"v_max3_f32 v{vA}, v{lst[0]}, v{lst[1]}, v{lst[2]}")
        k = 3
        while k < len(lst):
            if k + 1 < len(lst):
                g(f"v_max3_f32 v{vA}, v{vA}, v{lst[k]}, v{lst[k+1]}")
                k += 2
            else:
                g(f"v_max_f32 v{vA}, v{vA}, v{lst[k]}")
                k += 1
        for m in lst:
            g(f"v_sub_f32 v{m}, v{m}, v{vA}")
        for m in lst:
            g(f"v_exp_f32 v{m}, v{m}")
        waitfn(-1)
        if extra is not None:
            g(f"v_fma_f32 v{vB}, v{ms[0]}, v{ls[0]}, v{extra}")
        else:
            g(f"v_mul_f32 v{vB}, v{ms[0]}, v{ls[0]}")
        for i in range(1, n):
            g(f"v_fmac_f32 v{vB}, v{ms[i]}, v{ls[i]}")
        for i in range(n):
            waitfn(i)
            for r in range(4):
                qp = "[0,0,0,0]" if r < 2 else "[2,2,2,2]"
                if i == 0:
                    g(f"v_mul_f32_dpp v{ACC+r}, v{ms[i]}, v{os_[i]+r} quad_perm:{qp} {DPPALL}")
                else:
                    g(f"v_fmac_f32_dpp v{ACC+r}, v{ms[i]}, v{os_[i]+r} quad_perm:{qp} {DPPALL}")
        if extra is not None:
            g(f"v_fmac_f32_dpp v{ACC}, v{extra}, v{vVT0} quad_perm:[0,0,0,0] {DPPALL}")
            g(f"v_fmac_f32_dpp v{ACC+1}, v{extra}, v{vVT1} quad_perm:[0,0,0,0] {DPPALL}")
            g(f"v_fmac_f32_dpp v{ACC+2}, v{extra}, v{vVT0} quad_perm:[2,2,2,2] {DPPALL}")
            g(f"v_fmac_f32_dpp v{ACC+3}, v{extra}, v{vVT1} quad_perm:[2,2,2,2] {DPPALL}")

    def local_merge():
        g("s_waitcnt lgkmcnt(0)")
        g("s_barrier")
        if stamp:
            g("s_memrealtime s[64:65]")
        for i in range(NW // 4):
            g(f"ds_read_b128 {r4(MS+4*i)}, v{vE} offset:{LDS_ML+16*i}")
        for i in range(NW // 4):
            g(f"ds_read_b128 {r4(LS+4*i)}, v{vE} offset:{LDS_ML+16*NW+16*i}")
        g(f"v_lshlrev_b32 v{vC}, 4, v{vLane}")
        for w in range(NW):
            g(f"ds_read_b128 {r4(LO+4*w)}, v{vC} offset:{LDS_O+1024*w}")
        if stamp:
            g("s_waitcnt lgkmcnt(0)")
        g(f"s_waitcnt lgkmcnt({min(15, NW + NW // 4)})")
        def w1(i):
            if i == -1:
                g(f"s_waitcnt lgkmcnt({min(15, NW)})")
            else:
                g(f"s_waitcnt lgkmcnt({min(15, NW-1-i)})")
        combine([MS + i for i in range(NW)], [LS + i for i in range(NW)], [LO + 4 * i for i in range(NW)], w1)

    def put_stamps(final):
        if not stamp:
            return
        if not final:
            g("s_memrealtime s[66:67]")
            g("s_lshl_b32 s44, s2, 6")
            g("s_add_u32 s44, s44, 0x100000")
            g(f"v_mov_b32 v{ST}, s44")
            g("s_getreg_b32 s50, hwreg(HW_REG_XCC_ID)")
            g("s_getreg_b32 s51, hwreg(HW_REG_HW_ID)")
            g("s_waitcnt lgkmcnt(0)")
            for i, sr in enumerate([60, 61, 62, 63, 64, 65, 66, 67, 50, 51]):
                g(f"v_mov_b32 v{ST+2+i}, s{sr}")
            g(f"global_store_dwordx4 v{ST}, {r4(ST+2)}, s[20:21]")
            g(f"global_store_dwordx4 v{ST}, {r4(ST+6)}, s[20:21] offset:16")
            g(f"global_store_dwordx2 v{ST}, v[{ST+10}:{ST+11}], s[20:21] offset:40")
            g(f"v_mov_b32 v{ST+2}, 0")
            g(f"v_mov_b32 v{ST+3}, 0")
            g(f"global_store_dwordx2 v{ST}, v[{ST+2}:{ST+3}], s[20:21] offset:32")
            g(f"global_store_dwordx2 v{ST}, v[{ST+2}:{ST+3}], s[20:21] offset:48")
        else:
            g("s_waitcnt vmcnt(0)")
            g("s_memrealtime s[66:67]")
            g("s_waitcnt lgkmcnt(0)")
            g(f"v_mov_b32 v{ST+2}, s66")
            g(f"v_mov_b32 v{ST+3}, s67")
            g(f"global_store_dwordx2 v{ST}, v[{ST+2}:{ST+3}], s[20:21] offset:32")
            g(f"v_mov_b32 v{ST+2}, s45")
            g(f"v_mov_b32 v{ST+3}, 0")
            g(f"global_store_dwordx2 v{ST}, v[{ST+2}:{ST+3}], s[20:21] offset:48")

    def publish(sanitize):
        if sanitize:
            for r in range(4):
                g(f"v_min_u32 v{ACC+r}, -2, v{ACC+r}")
        g(f"global_store_dwordx4 v{vRec}, {r4(ACC)}, s[20:21] sc1")
        if sanitize:
            g(f"v_min_u32 v{vML}, -2, v{vA}")
            g(f"v_min_u32 v{vML+1}, -2, v{vB}")
        else:
            g(f"v_mov_b32 v{vML}, v{vA}")
            g(f"v_mov_b32 v{vML+1}, v{vB}")
        g("s_mov_b64 exec, 15")
        g(f"global_store_dwordx2 v{vRec2}, v[{vML}:{vML+1}], s[20:21] offset:1024 sc1")
        g("s_mov_b64 exec, -1")

    def output():
        g(f"v_rcp_f32 v{vB}, v{vB}")
        g("s_nop 1")
        g(f"v_mul_f32_dpp v{ACC}, v{vB}, v{ACC} quad_perm:[1,1,1,1] {DPPALL}")
        g(f"v_mul_f32_dpp v{ACC+1}, v{vB}, v{ACC+1} quad_perm:[1,1,1,1] {DPPALL}")
        g(f"v_mul_f32_dpp v{ACC+2}, v{vB}, v{ACC+2} quad_perm:[3,3,3,3] {DPPALL}")
        g(f"v_mul_f32_dpp v{ACC+3}, v{vB}, v{ACC+3} quad_perm:[3,3,3,3] {DPPALL}")
        g(f"v_cvt_pk_bf16_f32 v{D0}, v{ACC}, v{ACC+1}")
        g(f"v_cvt_pk_bf16_f32 v{D0+1}, v{ACC+2}, v{ACC+3}")
        of = (" " + a.outflags) if a.outflags else ""
        g(f"global_store_dword v{vOut}, v{D0}, s[16:17]{of}")
        g(f"global_store_dword v{vOut}, v{D0+1}, s[16:17] offset:256{of}")

    def final_merge():
        g(f"v_mov_b32 v{vML}, v{vA}")
        g(f"v_mov_b32 v{vML+1}, v{vB}")
        ms = [vML] + [RM + 2 * i for i in range(7)]
        ls = [vML + 1] + [RM + 2 * i + 1 for i in range(7)]
        os_ = [ACC] + [RO + 4 * i for i in range(7)]
        def w2(i):
            if i == -1:
                g("s_nop 0")
        combine(ms, ls, os_, w2, extra=vMt)
        output()

    g("s_cmp_lg_u32 s41, 0")
    g("s_cbranch_scc1 L_cw_last")
    qk(8, False)
    softmax(True)
    pv(0)
    finish_wave()
    g("s_waitcnt lgkmcnt(0)")
    g("s_barrier")
    g("s_endpgm")
    g.label("L_cw_last")
    g("s_mov_b32 s45, 0")
    if a.hand == 1:
        qk(9, False)
        softmax(True)
        g("s_waitcnt vmcnt(8)")
        g(f"v_readfirstlane_b32 s36, v{vTk}")
        g("s_nop 3")
        g("s_cmp_eq_u32 s36, 7")
        g("s_cbranch_scc1 L_cons")
        pv(0)
        finish_wave()
        local_merge()
        publish(True)
        put_stamps(False)
        g("s_endpgm")
        g.label("L_cons")
        polls()
        pv(14)
        finish_wave()
        local_merge()
        g(f"v_mov_b32 v{vML}, v{vA}")
        g(f"v_mov_b32 v{vML+1}, v{vB}")
        put_stamps(False)
        g.label("L_poll")
        g("s_waitcnt vmcnt(0)")
        regs = [RM + i for i in range(14)] + [RO + i for i in range(28)]
        g(f"v_max3_u32 v{vA}, v{regs[0]}, v{regs[1]}, v{regs[2]}")
        g(f"v_max3_u32 v{vB}, v{regs[3]}, v{regs[4]}, v{regs[5]}")
        k = 6
        tog = 0
        while k < len(regs):
            t = vA if tog == 0 else vB
            g(f"v_max3_u32 v{t}, v{t}, v{regs[k]}, v{regs[k+1]}")
            k += 2
            tog ^= 1
        g(f"v_max_u32 v{vA}, v{vA}, v{vB}")
        g(f"v_cmp_eq_u32 vcc, -1, v{vA}")
        g("s_cbranch_vccz L_ready")
        g("s_add_u32 s45, s45, 1")
        g("s_cmp_gt_u32 s45, 0x400000")
        g("s_cbranch_scc1 L_ready")
        polls()
        g("s_branch L_poll")
        g.label("L_ready")
        ms = [vML] + [RM + 2 * i for i in range(7)]
        ls = [vML + 1] + [RM + 2 * i + 1 for i in range(7)]
        os_ = [ACC] + [RO + 4 * i for i in range(7)]
        def w2(i):
            if i == -1:
                g("s_nop 0")
        combine(ms, ls, os_, w2, extra=vMt)
        output()
        put_stamps(True)
        g("s_endpgm")
    else:
        qk(8, False)
        softmax(True)
        pv(0)
        finish_wave()
        local_merge()
        publish(False)
        g("s_waitcnt vmcnt(0)")
        ticket()
        g("s_waitcnt vmcnt(0)")
        g(f"v_readfirstlane_b32 s36, v{vTk}")
        g("s_nop 3")
        put_stamps(False)
        g("s_cmp_lg_u32 s36, 7")
        g("s_cbranch_scc1 L_end")
        polls()
        ms = [vML] + [RM + 2 * i for i in range(7)]
        ls = [vML + 1] + [RM + 2 * i + 1 for i in range(7)]
        os_ = [ACC] + [RO + 4 * i for i in range(7)]
        g("s_waitcnt vmcnt(7)")
        def w3(i):
            if i == -1:
                g("s_nop 0")
            elif i >= 1:
                g(f"s_waitcnt vmcnt({7-i})")
        combine(ms, ls, os_, w3, extra=vMt)
        output()
        put_stamps(True)
    g.label("L_end")
    g("s_endpgm")

    maxv = 512 // (NW // 4)
    assert nvgpr <= min(256, maxv), nvgpr
    lds = max(lds_total, a.lds)
    nv = a.vgpr if a.vgpr else nvgpr
    nv = max(nv, nvgpr)
    out = HEADER
    out += f"; @launch grid=(256,1,1) block=({NW*64},1,1) lds={lds}\n"
    out += f""".amdgcn_target "amdgcn-amd-amdhsa--gfx950"
.text
.globl {NAME}_kernel
.p2align 8
.type {NAME}_kernel,@function
{NAME}_kernel:
"""
    out += g.text()
    out += f""".section .rodata,"a"
.p2align 6
.amdhsa_kernel {NAME}_kernel
  .amdhsa_next_free_vgpr {nv}
  .amdhsa_next_free_sgpr 96
  .amdhsa_accum_offset {(nv + 3) // 4 * 4}
  .amdhsa_group_segment_fixed_size 0
  .amdhsa_kernarg_size 72
  .amdhsa_user_sgpr_count 2
  .amdhsa_user_sgpr_kernarg_segment_ptr 1
  .amdhsa_system_sgpr_workgroup_id_x 1
.end_amdhsa_kernel
"""
    return out


if __name__ == "__main__":
    ap = argparse.ArgumentParser()
    ap.add_argument("-o", default=None)
    ap.add_argument("--ldflags", default="nt")
    ap.add_argument("--outflags", default="")
    ap.add_argument("--nw", type=int, default=8)
    ap.add_argument("--cw", type=int, default=-1)
    ap.add_argument("--xcdmap", type=int, default=1)
    ap.add_argument("--counts", default="32,32,32,32,32,32,32,32")
    ap.add_argument("--hand", type=int, default=1)
    ap.add_argument("--tkshift", type=int, default=3)
    ap.add_argument("--lds", type=int, default=90000)
    ap.add_argument("--vgpr", type=int, default=0)
    ap.add_argument("--stamp", type=int, default=0)
    a = ap.parse_args()
    s = gen(a)
    if a.o:
        open(a.o, "w").write(s)
    else:
        sys.stdout.write(s)
```

```python
import sys, argparse, struct

NAME = "standalone__tree_speculative_verify_tree_attention_over_candidate_token_tree__decode"

HEADER = """; Kernarg layout for this problem (72 bytes, ptrs only, base s[0:1]):
"""

def f32bits(x):
    return struct.unpack("<I", struct.pack("<f", x))[0]

C1 = (128 ** -0.5) * 1.4426950408889634
MASKC = -1.0e9 * 1.4426950408889634
DPPALL = "row_mask:0xf bank_mask:0xf"


class G:
    def __init__(self):
        self.l = []
    def __call__(self, s):
        self.l.append("    " + s)
    def label(self, s):
        self.l.append(s + ":")
    def text(self):
        return "\n".join(self.l) + "\n"


def r4(b):
    return f"v[{b}:{b+3}]"


def gen(a):
    NW = a.nw
    LNW = NW.bit_length() - 1
    CW = a.cw if a.cw >= 0 else NW - 1
    ldf = (" " + a.ldflags) if a.ldflags else ""
    stamp = a.stamp
    counts = [int(x) for x in a.counts.split(",")]
    assert len(counts) == 8 and sum(counts) == 256 and min(counts) >= 2 * NW
    starts = [sum(counts[:i]) for i in range(8)]
    g = G()
    vLane, vWave, vA, vB, vC = 1, 2, 3, 4, 5
    vK, vV = 6, 7
    Q = 8
    ACC = 12
    D0, D1 = 16, 20
    T0, T1 = 24, 25
    vM, vL, vPM = 26, 27, 28
    vAl = 29
    vOA = 30
    vE = 31
    AS = [32, 36]
    KR, VR = 40, 72
    vMt, vVT0, vVT1, vTkA, vTk, vRec, vRec2, vOut = 104, 105, 106, 107, 108, 109, 110, 111
    vML = 112
    RO = 116
    RM = RO + 32
    ST = RM + 16
    nvgpr = ST + (16 if stamp else 0)
    LO = KR
    MS = VR
    LS = VR + 16
    LDS_O = 0
    LDS_ML = NW * 1024
    lds_total = NW * 1024 + 2 * 4 * NW * 4
    tile_stride = NW * 8192

    def pack(vals):
        lo = sum(v << (8 * i) for i, v in enumerate(vals[:4]))
        hi = sum(v << (8 * i) for i, v in enumerate(vals[4:]))
        return lo, hi

    g("s_cmp_ge_u32 s2, 256")
    g("s_cbranch_scc1 L_end")
    if stamp:
        g("s_memrealtime s[60:61]")
    g("s_load_dwordx16 s[4:19], s[0:1], 0")
    g("s_load_dwordx2 s[20:21], s[0:1], 64")
    g(f"v_and_b32 v{vLane}, 63, v0")
    g(f"v_lshrrev_b32 v{vWave}, 6, v0")
    if a.xcdmap == 1:
        g("s_and_b32 s23, s2, 7")
        g("s_lshl_b32 s23, s23, 2")
        g("s_bfe_u32 s3, s2, 0x20003")
        g("s_add_u32 s23, s23, s3")
        g("s_lshr_b32 s37, s2, 5")
    elif a.xcdmap == 2:
        g("s_bfe_u32 s23, s2, 0x20001")
        g("s_lshl_b32 s23, s23, 3")
        g("s_bfe_u32 s3, s2, 0x30003")
        g("s_add_u32 s23, s23, s3")
        g("s_lshr_b32 s37, s2, 6")
        g("s_lshl_b32 s37, s37, 1")
        g("s_and_b32 s3, s2, 1")
        g("s_add_u32 s37, s37, s3")
    elif a.xcdmap == 3:
        g("s_bfe_u32 s23, s2, 0x20001")
        g("s_lshl_b32 s23, s23, 3")
        g("s_bfe_u32 s3, s2, 0x30003")
        g("s_add_u32 s23, s23, s3")
        g("s_lshr_b32 s37, s2, 6")
        g("s_and_b32 s3, s2, 1")
        g("s_lshl_b32 s3, s3, 2")
        g("s_add_u32 s37, s37, s3")
    elif a.xcdmap == 4:
        g("s_bfe_u32 s23, s2, 0x20001")
        g("s_lshl_b32 s23, s23, 3")
        g("s_lshr_b32 s3, s2, 5")
        g("s_add_u32 s23, s23, s3")
        g("s_bfe_u32 s37, s2, 0x20003")
        g("s_and_b32 s3, s2, 1")
        g("s_lshl_b32 s3, s3, 2")
        g("s_add_u32 s37, s37, s3")
    elif a.xcdmap == 5:
        g("s_and_b32 s23, s2, 7")
        g("s_lshl_b32 s23, s23, 2")
        g("s_lshr_b32 s3, s2, 6")
        g("s_add_u32 s23, s23, s3")
        g("s_bfe_u32 s37, s2, 0x30003")
    else:
        g("s_lshr_b32 s23, s2, 3")
        g("s_and_b32 s37, s2, 7")
    g(f"v_readfirstlane_b32 s22, v{vWave}")
    uniform = all(c == 32 for c in counts)
    if uniform:
        g("s_lshl_b32 s30, s37, 5")
        g("s_mov_b32 s31, 32")
    else:
        lo, hi = pack(starts)
        g(f"s_mov_b32 s28, 0x{lo:08x}")
        g(f"s_mov_b32 s29, 0x{hi:08x}")
        g("s_lshl_b32 s3, s37, 3")
        g("s_lshr_b64 s[30:31], s[28:29], s3")
        g("s_and_b32 s30, s30, 0xff")
        lo, hi = pack(counts)
        g(f"s_mov_b32 s28, 0x{lo:08x}")
        g(f"s_mov_b32 s29, 0x{hi:08x}")
        g("s_lshr_b64 s[28:29], s[28:29], s3")
        g("s_and_b32 s31, s28, 0xff")
    g("s_lshl_b32 s38, s23, 3")
    g("s_add_u32 s38, s38, s37")
    g("s_lshl_b32 s3, s23, 8")
    g("s_add_u32 s3, s3, s30")
    g("s_lshl_b32 s3, s3, 13")
    g("s_add_u32 s3, s3, 4096")
    if a.rotw:
        g(a.rotw.replace("DST", "s42"))
        g("s_add_u32 s42, s42, s22")
        g(f"s_and_b32 s42, s42, {NW-1}")
    else:
        g("s_mov_b32 s42, s22")
    g("s_sub_u32 s40, s31, s42")
    g("s_sub_u32 s40, s40, 1")
    g(f"s_lshr_b32 s40, s40, {LNW}")
    g("s_lshl_b32 s43, s42, 13")
    g("s_add_u32 s3, s3, s43")
    if a.rotr:
        g(a.rotr.replace("DST", "s46"))
        g("s_min_u32 s46, s46, s40")
        g(f"s_mul_i32 s43, s46, 0x{tile_stride:x}")
        g("s_add_u32 s3, s3, s43")
        g("s_sub_u32 s47, s40, s46")
        g("s_mov_b32 s48, s47")
        g(f"s_mul_i32 s49, s40, 0x{tile_stride:x}")
        g("s_sub_u32 s49, 0, s49")
    g(f"v_mov_b32 v{vA}, s3")
    g(f"v_lshl_add_u32 v{vV}, v{vLane}, 4, v{vA}")
    g(f"v_bfe_u32 v{vB}, v{vLane}, 2, 2")
    g(f"v_lshl_add_u32 v{vA}, v{vB}, 8, v{vA}")
    g(f"v_lshrrev_b32 v{vC}, 4, v{vLane}")
    g(f"v_lshl_add_u32 v{vA}, v{vC}, 6, v{vA}")
    g(f"v_and_b32 v{vK}, 3, v{vLane}")
    g(f"v_lshl_add_u32 v{vK}, v{vK}, 4, v{vA}")
    g("s_lshl_b32 s24, s23, 9")
    g(f"v_lshlrev_b32 v{vC}, 6, v{vC}")
    g(f"v_lshl_add_u32 v{vC}, v{vB}, 4, v{vC}")
    g(f"v_bfe_u32 v{vA}, v{vLane}, 1, 1")
    g(f"v_lshl_add_u32 v{vA}, v{vA}, 8, v{vC}")
    g(f"v_add_u32 v{vA}, s24, v{vA}")
    g(f"s_lshl_b32 s34, s23, {a.tkshift}")
    g(f"v_mov_b32 v{vTkA}, s34")
    g(f"s_cmp_eq_u32 s22, {CW}")
    g("s_cselect_b32 s41, 1, 0")
    g("s_waitcnt lgkmcnt(0)")
    g(f"global_load_dwordx4 {r4(Q)}, v{vA}, s[4:5]")

    def issue(isv, adv=True):
        ar, base, rb = (vV, "s[8:9]", VR) if isv else (vK, "s[6:7]", KR)
        for j in range(8):
            g(f"global_load_dwordx4 {r4(rb+4*j)}, v{ar}, {base} offset:{j*1024-4096}{ldf}")
        if adv:
            if a.rotr:
                c = 48 if isv else 47
                g(f"s_cmp_eq_u32 s{c}, 0")
                g(f"s_cselect_b32 s43, s49, 0x{tile_stride:x}")
                g(f"s_sub_u32 s{c}, s{c}, 1")
                g(f"v_add_u32 v{ar}, s43, v{ar}")
            else:
                g(f"v_add_u32 v{ar}, 0x{tile_stride:x}, v{ar}")

    g("s_cbranch_scc0 L_nocw0")
    g("s_lshl_b32 s26, s23, 8")
    g(f"v_lshrrev_b32 v{vA}, 4, v{vLane}")
    g(f"v_lshlrev_b32 v{vB}, 6, v{vA}")
    g(f"v_and_b32 v{vC}, 3, v{vLane}")
    g(f"v_lshl_add_u32 v{vB}, v{vC}, 4, v{vB}")
    g(f"v_add_u32 v{vB}, s26, v{vB}")
    g(f"global_load_dwordx4 {r4(D1)}, v{vB}, s[10:11]")
    g(f"v_lshlrev_b32 v{vRec2}, 3, v{vC}")
    g(f"v_and_b32 v{vC}, 15, v{vLane}")
    g(f"v_lshlrev_b32 v{vC}, 4, v{vC}")
    g(f"v_lshl_add_u32 v{vOut}, v{vA}, 2, v{vC}")
    g(f"v_add_u32 v{vC}, s26, v{vOut}")
    g(f"global_load_dword v{vVT1}, v{vC}, s[12:13]")
    g("s_load_dword s27, s[14:15], 0")
    g(f"v_add_u32 v{vOut}, s24, v{vOut}")
    g("s_lshl_b32 s32, s38, 11")
    g(f"v_lshlrev_b32 v{vRec}, 4, v{vLane}")
    g(f"v_add_u32 v{vRec}, s32, v{vRec}")
    g(f"v_add_u32 v{vRec2}, s32, v{vRec2}")
    g(f"v_mov_b32 v{vTk}, 1")
    if a.hand == 1:
        for r in range(4):
            g(f"v_mov_b32 v{RO+r}, -1")
        g(f"global_store_dwordx4 v{vRec}, {r4(RO)}, s[20:21] sc1")
        g("s_mov_b64 exec, 15")
        g(f"global_store_dwordx2 v{vRec2}, v[{RO}:{RO+1}], s[20:21] offset:1024 sc1")
        g("s_mov_b64 exec, -1")
    g.label("L_nocw0")
    issue(0)
    issue(1)
    g(f"s_mov_b32 s25, 0x{f32bits(C1):08x}")
    g(f"v_and_b32 v{vA}, 1, v{vLane}")
    g(f"v_lshlrev_b32 v{vA}, 4, v{vA}")
    g(f"v_mov_b32 v{vB}, 0xffff")
    g(f"v_lshlrev_b32 v{vPM}, v{vA}, v{vB}")
    for s in AS:
        for r in range(4):
            g(f"v_mov_b32 v{s+r}, 0")
    for r in range(4):
        g(f"v_mov_b32 v{ACC+r}, 0")
    g(f"v_lshlrev_b32 v{vOA}, 4, v0")
    g(f"v_mov_b32 v{vL}, 0")
    g(f"v_mov_b32 v{vM}, 0xff7fffff")
    g(f"v_and_b32 v{vE}, 3, v{vLane}")
    g(f"v_mul_u32_u24 v{vE}, {4*NW}, v{vE}")
    g("s_cmp_lg_u32 s41, 0")
    g("s_cbranch_scc0 L_loop")
    g("s_waitcnt vmcnt(16) lgkmcnt(0)")
    g(f"v_mfma_f32_16x16x32_bf16 {r4(D0)}, {r4(D1)}, {r4(Q)}, 0")
    g(f"v_lshlrev_b32 v{vVT0}, 16, v{vVT1}")
    g(f"v_and_b32 v{vVT1}, 0xffff0000, v{vVT1}")
    g("s_lshr_b32 s33, s23, 4")
    g("s_lshl_b32 s33, s33, 4")
    g("s_lshr_b32 s27, s27, s33")
    g("s_lshl_b32 s27, s27, 16")
    g("s_nop 3")
    g(f"v_add_f32_dpp v{vA}, v{D0+1}, v{D0} row_ror:12 {DPPALL}")
    g(f"v_add_f32_dpp v{vB}, v{D0+3}, v{D0+2} row_ror:12 {DPPALL}")
    g("s_nop 1")
    g(f"v_add_f32_dpp v{vA}, v{vB}, v{vA} row_ror:8 {DPPALL}")
    g("s_nop 1")
    g(f"v_mov_b32_dpp v{vMt}, v{vA} quad_perm:[0,1,2,3] row_mask:0xf bank_mask:0x1")
    g("s_nop 1")
    g(f"v_mov_b32_dpp v{vMt}, v{vA} row_ror:4 row_mask:0xf bank_mask:0x2")
    g("s_nop 1")
    g(f"v_mov_b32_dpp v{vMt}, v{vA} row_ror:8 row_mask:0xf bank_mask:0x4")
    g("s_nop 1")
    g(f"v_mov_b32_dpp v{vMt}, v{vA} row_ror:12 row_mask:0xf bank_mask:0x8")
    g(f"v_sub_f32 v{vB}, 1.0, s27")
    g(f"v_mul_f32 v{vB}, 0x{f32bits(MASKC):08x}, v{vB}")
    g(f"v_fma_f32 v{vMt}, v{vMt}, s25, v{vB}")
    if stamp:
        g("s_waitcnt vmcnt(15)")
        g("s_memrealtime s[62:63]")

    def xreduce(op, x, y):
        g("s_nop 1")
        g(f"{op}_dpp v{y}, v{x}, v{x} row_ror:4 {DPPALL}")
        g("s_nop 1")
        g(f"{op}_dpp v{x}, v{y}, v{y} row_ror:8 {DPPALL}")
        g(f"v_mov_b32 v{y}, v{x}")
        g("s_nop 1")
        g(f"v_permlane16_swap_b32 v{x}, v{y}")
        g(f"{op} v{x}, v{x}, v{y}")
        g(f"v_mov_b32 v{y}, v{x}")
        g("s_nop 1")
        g(f"v_permlane32_swap_b32 v{x}, v{y}")
        g(f"{op} v{x}, v{x}, v{y}")

    def ror(n):
        n %= 16
        return "quad_perm:[0,1,2,3]" if n == 0 else f"row_ror:{n}"

    def qk(younger, nxt):
        for j in range(8):
            D = D0 if j % 2 == 0 else D1
            g(f"s_waitcnt vmcnt({younger + 7 - j})")
            g(f"v_mfma_f32_16x16x32_bf16 {r4(D)}, {r4(KR+4*j)}, {r4(Q)}, 0")
            if j >= 1:
                jp = j - 1
                Dp = D0 if jp % 2 == 0 else D1
                q = jp & 3
                T = T0 if jp < 4 else T1
                x, y, z, w_ = [Dp + ((q + i) % 4) for i in range(4)]
                g("s_nop 6")
                g(f"v_add_f32_dpp v{vA}, v{y}, v{x} row_ror:12 {DPPALL}")
                g(f"v_add_f32_dpp v{vB}, v{w_}, v{z} row_ror:12 {DPPALL}")
                g("s_nop 1")
                g(f"v_add_f32_dpp v{T}, v{vB}, v{vA} row_ror:8 row_mask:0xf bank_mask:0x{1<<q:x}")
        if nxt:
            issue(0)
        else:
            g("s_nop 4")
        Dp = D1
        q = 3
        x, y, z, w_ = [Dp + ((q + i) % 4) for i in range(4)]
        g(f"v_add_f32_dpp v{vA}, v{y}, v{x} row_ror:12 {DPPALL}")
        g(f"v_add_f32_dpp v{vB}, v{w_}, v{z} row_ror:12 {DPPALL}")
        g("s_nop 1")
        g(f"v_add_f32_dpp v{T1}, v{vB}, v{vA} row_ror:8 row_mask:0xf bank_mask:0x{1<<q:x}")

    def softmax(last):
        g(f"v_max_f32 v{vA}, v{T0}, v{T1}")
        xreduce("v_max_f32", vA, vB)
        g(f"v_mul_f32 v{vA}, s25, v{vA}")
        g(f"v_max_f32 v{vA}, v{vA}, v{vM}")
        g(f"v_sub_f32 v{vAl}, v{vM}, v{vA}")
        g(f"v_mov_b32 v{vM}, v{vA}")
        g(f"v_exp_f32 v{vAl}, v{vAl}")
        g(f"v_fma_f32 v{T0}, v{T0}, s25, -v{vM}")
        g(f"v_fma_f32 v{T1}, v{T1}, s25, -v{vM}")
        g(f"v_exp_f32 v{T0}, v{T0}")
        g(f"v_exp_f32 v{T1}, v{T1}")
        g(f"v_mul_f32 v{vL}, v{vL}, v{vAl}")
        for r in range(4):
            qp = "[0,0,0,0]" if r < 2 else "[2,2,2,2]"
            g(f"v_mul_f32_dpp v{ACC+r}, v{vAl}, v{ACC+r} quad_perm:{qp} {DPPALL}")
        g(f"v_cvt_pk_bf16_f32 v{T0}, v{T0}, v{T0}")
        g(f"v_cvt_pk_bf16_f32 v{T1}, v{T1}, v{T1}")
        g(f"v_and_b32 v{T0}, v{T0}, v{vPM}")
        g(f"v_and_b32 v{T1}, v{T1}, v{vPM}")
        g(f"v_add_f32 v{vL}, v{vL}, v{T0}")
        g(f"v_add_f32 v{vL}, v{vL}, v{T1}")
        if last:
            xreduce("v_add_f32", vL, vB)
            g(f"v_lshl_add_u32 v{vB}, v{vWave}, 2, v{vE}")
            g(f"ds_write_b32 v{vB}, v{vM} offset:{LDS_ML}")
            g(f"ds_write_b32 v{vB}, v{vL} offset:{LDS_ML+16*NW}")

    def pv(younger):
        for j in range(8):
            A = AS[j % 2]
            T = T0 if j < 4 else T1
            q = j & 3
            for r in range(4):
                g(f"v_mov_b32_dpp v{A+r}, v{T} {ror(4*(r-q))} row_mask:0xf bank_mask:0x{1<<r:x}")
            g(f"s_waitcnt vmcnt({younger + 7 - j})")
            g("s_nop 0")
            g(f"v_mfma_f32_16x16x32_bf16 {r4(ACC)}, {r4(A)}, {r4(VR+4*j)}, {r4(ACC)}")

    def ticket():
        g("s_mov_b64 exec, 1")
        g(f"global_atomic_add v{vTk}, v{vTkA}, v{vTk}, s[18:19] sc0")
        g("s_mov_b64 exec, -1")

    g.label("L_loop")
    qk(8, True)
    softmax(False)
    pv(8)
    if a.hand == 1:
        g("s_cmp_eq_u32 s40, s41")
        g("s_cbranch_scc0 L_notk")
        ticket()
        g.label("L_notk")
    issue(1)
    g("s_sub_u32 s40, s40, 1")
    g("s_cmp_lg_u32 s40, 0")
    g("s_cbranch_scc1 L_loop")

    def finish_wave():
        g("s_nop 7")
        g(f"ds_write_b128 v{vOA}, {r4(ACC)} offset:{LDS_O}")

    def polls():
        for i in range(1, 8):
            g(f"v_xor_b32 v{vA}, {i*2048}, v{vRec2}")
            g(f"global_load_dwordx2 v[{RM+2*(i-1)}:{RM+2*(i-1)+1}], v{vA}, s[20:21] offset:1024 sc1")
        for i in range(1, 8):
            g(f"v_xor_b32 v{vA}, {i*2048}, v{vRec}")
            g(f"global_load_dwordx4 {r4(RO+4*(i-1))}, v{vA}, s[20:21] sc1")

    def combine(ms, ls, os_, waitfn, extra=None, own=False):
        n = len(ms)
        lst = list(ms) + ([extra] if extra is not None else [])
        g(f"v_max3_f32 v{vA}, v{lst[0]}, v{lst[1]}, v{lst[2]}")
        k = 3
        while k < len(lst):
            if k + 1 < len(lst):
                g(f"v_max3_f32 v{vA}, v{vA}, v{lst[k]}, v{lst[k+1]}")
                k += 2
            else:
                g(f"v_max_f32 v{vA}, v{vA}, v{lst[k]}")
                k += 1
        for m in lst:
            g(f"v_sub_f32 v{m}, v{m}, v{vA}")
        for m in lst:
            g(f"v_exp_f32 v{m}, v{m}")
        waitfn(-1)
        if extra is not None:
            g(f"v_fma_f32 v{vB}, v{ms[0]}, v{ls[0]}, v{extra}")
        else:
            g(f"v_mul_f32 v{vB}, v{ms[0]}, v{ls[0]}")
        for i in range(1, n):
            g(f"v_fmac_f32 v{vB}, v{ms[i]}, v{ls[i]}")
        for i in range(n):
            waitfn(i)
            for r in range(4):
                qp = "[0,0,0,0]" if r < 2 else "[2,2,2,2]"
                if i == 0:
                    g(f"v_mul_f32_dpp v{ACC+r}, v{ms[i]}, v{os_[i]+r} quad_perm:{qp} {DPPALL}")
                else:
                    g(f"v_fmac_f32_dpp v{ACC+r}, v{ms[i]}, v{os_[i]+r} quad_perm:{qp} {DPPALL}")
        if extra is not None:
            g(f"v_fmac_f32_dpp v{ACC}, v{extra}, v{vVT0} quad_perm:[0,0,0,0] {DPPALL}")
            g(f"v_fmac_f32_dpp v{ACC+1}, v{extra}, v{vVT1} quad_perm:[0,0,0,0] {DPPALL}")
            g(f"v_fmac_f32_dpp v{ACC+2}, v{extra}, v{vVT0} quad_perm:[2,2,2,2] {DPPALL}")
            g(f"v_fmac_f32_dpp v{ACC+3}, v{extra}, v{vVT1} quad_perm:[2,2,2,2] {DPPALL}")

    def local_merge():
        g("s_waitcnt lgkmcnt(0)")
        g("s_barrier")
        if stamp:
            g("s_memrealtime s[64:65]")
        for i in range(NW // 4):
            g(f"ds_read_b128 {r4(MS+4*i)}, v{vE} offset:{LDS_ML+16*i}")
        for i in range(NW // 4):
            g(f"ds_read_b128 {r4(LS+4*i)}, v{vE} offset:{LDS_ML+16*NW+16*i}")
        g(f"v_lshlrev_b32 v{vC}, 4, v{vLane}")
        for w in range(NW):
            g(f"ds_read_b128 {r4(LO+4*w)}, v{vC} offset:{LDS_O+1024*w}")
        if stamp:
            g("s_waitcnt lgkmcnt(0)")
        g(f"s_waitcnt lgkmcnt({min(15, NW + NW // 4)})")
        def w1(i):
            if i == -1:
                g(f"s_waitcnt lgkmcnt({min(15, NW)})")
            else:
                g(f"s_waitcnt lgkmcnt({min(15, NW-1-i)})")
        combine([MS + i for i in range(NW)], [LS + i for i in range(NW)], [LO + 4 * i for i in range(NW)], w1)

    def put_stamps(final):
        if not stamp:
            return
        if not final:
            g("s_memrealtime s[66:67]")
            g("s_lshl_b32 s44, s2, 6")
            g("s_add_u32 s44, s44, 0x100000")
            g(f"v_mov_b32 v{ST}, s44")
            g("s_getreg_b32 s50, hwreg(HW_REG_XCC_ID)")
            g("s_getreg_b32 s51, hwreg(HW_REG_HW_ID)")
            g("s_waitcnt lgkmcnt(0)")
            for i, sr in enumerate([60, 61, 62, 63, 64, 65, 66, 67, 50, 51]):
                g(f"v_mov_b32 v{ST+2+i}, s{sr}")
            g(f"global_store_dwordx4 v{ST}, {r4(ST+2)}, s[20:21]")
            g(f"global_store_dwordx4 v{ST}, {r4(ST+6)}, s[20:21] offset:16")
            g(f"global_store_dwordx2 v{ST}, v[{ST+10}:{ST+11}], s[20:21] offset:40")
            g(f"v_mov_b32 v{ST+2}, 0")
            g(f"v_mov_b32 v{ST+3}, 0")
            g(f"global_store_dwordx2 v{ST}, v[{ST+2}:{ST+3}], s[20:21] offset:32")
            g(f"global_store_dwordx2 v{ST}, v[{ST+2}:{ST+3}], s[20:21] offset:48")
        else:
            g("s_waitcnt vmcnt(0)")
            g("s_memrealtime s[66:67]")
            g("s_waitcnt lgkmcnt(0)")
            g(f"v_mov_b32 v{ST+2}, s66")
            g(f"v_mov_b32 v{ST+3}, s67")
            g(f"global_store_dwordx2 v{ST}, v[{ST+2}:{ST+3}], s[20:21] offset:32")
            g(f"v_mov_b32 v{ST+2}, s45")
            g(f"v_mov_b32 v{ST+3}, 0")
            g(f"global_store_dwordx2 v{ST}, v[{ST+2}:{ST+3}], s[20:21] offset:48")

    def publish(sanitize):
        if sanitize:
            for r in range(4):
                g(f"v_min_u32 v{ACC+r}, -2, v{ACC+r}")
        g(f"global_store_dwordx4 v{vRec}, {r4(ACC)}, s[20:21] sc1")
        if sanitize:
            g(f"v_min_u32 v{vML}, -2, v{vA}")
            g(f"v_min_u32 v{vML+1}, -2, v{vB}")
        else:
            g(f"v_mov_b32 v{vML}, v{vA}")
            g(f"v_mov_b32 v{vML+1}, v{vB}")
        g("s_mov_b64 exec, 15")
        g(f"global_store_dwordx2 v{vRec2}, v[{vML}:{vML+1}], s[20:21] offset:1024 sc1")
        g("s_mov_b64 exec, -1")

    def output():
        g(f"v_rcp_f32 v{vB}, v{vB}")
        g("s_nop 1")
        g(f"v_mul_f32_dpp v{ACC}, v{vB}, v{ACC} quad_perm:[1,1,1,1] {DPPALL}")
        g(f"v_mul_f32_dpp v{ACC+1}, v{vB}, v{ACC+1} quad_perm:[1,1,1,1] {DPPALL}")
        g(f"v_mul_f32_dpp v{ACC+2}, v{vB}, v{ACC+2} quad_perm:[3,3,3,3] {DPPALL}")
        g(f"v_mul_f32_dpp v{ACC+3}, v{vB}, v{ACC+3} quad_perm:[3,3,3,3] {DPPALL}")
        g(f"v_cvt_pk_bf16_f32 v{D0}, v{ACC}, v{ACC+1}")
        g(f"v_cvt_pk_bf16_f32 v{D0+1}, v{ACC+2}, v{ACC+3}")
        of = (" " + a.outflags) if a.outflags else ""
        g(f"global_store_dword v{vOut}, v{D0}, s[16:17]{of}")
        g(f"global_store_dword v{vOut}, v{D0+1}, s[16:17] offset:256{of}")

    def final_merge():
        g(f"v_mov_b32 v{vML}, v{vA}")
        g(f"v_mov_b32 v{vML+1}, v{vB}")
        ms = [vML] + [RM + 2 * i for i in range(7)]
        ls = [vML + 1] + [RM + 2 * i + 1 for i in range(7)]
        os_ = [ACC] + [RO + 4 * i for i in range(7)]
        def w2(i):
            if i == -1:
                g("s_nop 0")
        combine(ms, ls, os_, w2, extra=vMt)
        output()

    g("s_cmp_lg_u32 s41, 0")
    g("s_cbranch_scc1 L_cw_last")
    qk(8, False)
    softmax(True)
    pv(0)
    finish_wave()
    g("s_waitcnt lgkmcnt(0)")
    g("s_barrier")
    g("s_endpgm")
    g.label("L_cw_last")
    g("s_mov_b32 s45, 0")
    if a.hand == 1:
        qk(9, False)
        softmax(True)
        g("s_waitcnt vmcnt(8)")
        g(f"v_readfirstlane_b32 s36, v{vTk}")
        g("s_nop 3")
        g("s_cmp_eq_u32 s36, 7")
        g("s_cbranch_scc1 L_cons")
        pv(0)
        finish_wave()
        local_merge()
        publish(True)
        put_stamps(False)
        g("s_endpgm")
        g.label("L_cons")
        polls()
        pv(14)
        finish_wave()
        local_merge()
        g(f"v_mov_b32 v{vML}, v{vA}")
        g(f"v_mov_b32 v{vML+1}, v{vB}")
        put_stamps(False)
        g.label("L_poll")
        g("s_waitcnt vmcnt(0)")
        regs = [RM + i for i in range(14)] + [RO + i for i in range(28)]
        g(f"v_max3_u32 v{vA}, v{regs[0]}, v{regs[1]}, v{regs[2]}")
        g(f"v_max3_u32 v{vB}, v{regs[3]}, v{regs[4]}, v{regs[5]}")
        k = 6
        tog = 0
        while k < len(regs):
            t = vA if tog == 0 else vB
            g(f"v_max3_u32 v{t}, v{t}, v{regs[k]}, v{regs[k+1]}")
            k += 2
            tog ^= 1
        g(f"v_max_u32 v{vA}, v{vA}, v{vB}")
        g(f"v_cmp_eq_u32 vcc, -1, v{vA}")
        g("s_cbranch_vccz L_ready")
        g("s_add_u32 s45, s45, 1")
        g("s_cmp_gt_u32 s45, 0x400000")
        g("s_cbranch_scc1 L_ready")
        polls()
        g("s_branch L_poll")
        g.label("L_ready")
        ms = [vML] + [RM + 2 * i for i in range(7)]
        ls = [vML + 1] + [RM + 2 * i + 1 for i in range(7)]
        os_ = [ACC] + [RO + 4 * i for i in range(7)]
        def w2(i):
            if i == -1:
                g("s_nop 0")
        combine(ms, ls, os_, w2, extra=vMt)
        output()
        put_stamps(True)
        g("s_endpgm")
    else:
        qk(8, False)
        softmax(True)
        pv(0)
        finish_wave()
        local_merge()
        publish(False)
        g("s_waitcnt vmcnt(0)")
        ticket()
        g("s_waitcnt vmcnt(0)")
        g(f"v_readfirstlane_b32 s36, v{vTk}")
        g("s_nop 3")
        put_stamps(False)
        g("s_cmp_lg_u32 s36, 7")
        g("s_cbranch_scc1 L_end")
        polls()
        ms = [vML] + [RM + 2 * i for i in range(7)]
        ls = [vML + 1] + [RM + 2 * i + 1 for i in range(7)]
        os_ = [ACC] + [RO + 4 * i for i in range(7)]
        g("s_waitcnt vmcnt(7)")
        def w3(i):
            if i == -1:
                g("s_nop 0")
            elif i >= 1:
                g(f"s_waitcnt vmcnt({7-i})")
        combine(ms, ls, os_, w3, extra=vMt)
        output()
        put_stamps(True)
    g.label("L_end")
    g("s_endpgm")

    maxv = 512 // (NW // 4)
    assert nvgpr <= min(256, maxv), nvgpr
    lds = max(lds_total, a.lds)
    nv = a.vgpr if a.vgpr else nvgpr
    nv = max(nv, nvgpr)
    out = HEADER
    out += f"; @launch grid=(256,1,1) block=({NW*64},1,1) lds={lds}\n"
    out += f""".amdgcn_target "amdgcn-amd-amdhsa--gfx950"
.text
.globl {NAME}_kernel
.p2align 8
.type {NAME}_kernel,@function
{NAME}_kernel:
"""
    out += g.text()
    out += f""".section .rodata,"a"
.p2align 6
.amdhsa_kernel {NAME}_kernel
  .amdhsa_next_free_vgpr {nv}
  .amdhsa_next_free_sgpr 96
  .amdhsa_accum_offset {(nv + 3) // 4 * 4}
  .amdhsa_group_segment_fixed_size 0
  .amdhsa_kernarg_size 72
  .amdhsa_user_sgpr_count 2
  .amdhsa_user_sgpr_kernarg_segment_ptr 1
  .amdhsa_system_sgpr_workgroup_id_x 1
.end_amdhsa_kernel
"""
    return out


if __name__ == "__main__":
    ap = argparse.ArgumentParser()
    ap.add_argument("-o", default=None)
    ap.add_argument("--ldflags", default="nt")
    ap.add_argument("--outflags", default="")
    ap.add_argument("--nw", type=int, default=8)
    ap.add_argument("--cw", type=int, default=-1)
    ap.add_argument("--xcdmap", type=int, default=1)
    ap.add_argument("--counts", default="32,32,32,32,32,32,32,32")
    ap.add_argument("--hand", type=int, default=1)
    ap.add_argument("--tkshift", type=int, default=3)
    ap.add_argument("--rotw", default="")
    ap.add_argument("--rotr", default="")
    ap.add_argument("--lds", type=int, default=90000)
    ap.add_argument("--vgpr", type=int, default=0)
    ap.add_argument("--stamp", type=int, default=0)
    a = ap.parse_args()
    s = gen(a)
    if a.o:
        open(a.o, "w").write(s)
    else:
        sys.stdout.write(s)
```

```python
import sys, argparse, struct

NAME = "standalone__tree_speculative_verify_tree_attention_over_candidate_token_tree__decode"

HEADER = """; Kernarg layout for this problem (72 bytes, ptrs only, base s[0:1]):
"""

def f32bits(x):
    return struct.unpack("<I", struct.pack("<f", x))[0]

C1 = (128 ** -0.5) * 1.4426950408889634
MASKC = -1.0e9 * 1.4426950408889634
DPPALL = "row_mask:0xf bank_mask:0xf"


class G:
    def __init__(self):
        self.l = []
    def __call__(self, s):
        self.l.append("    " + s)
    def label(self, s):
        self.l.append(s + ":")
    def text(self):
        return "\n".join(self.l) + "\n"


def r4(b):
    return f"v[{b}:{b+3}]"


def gen(a):
    NW = a.nw
    LNW = NW.bit_length() - 1
    CW = a.cw if a.cw >= 0 else NW - 1
    ldf = (" " + a.ldflags) if a.ldflags else ""
    stamp = a.stamp
    counts = [int(x) for x in a.counts.split(",")]
    assert len(counts) == 8 and sum(counts) == 256 and min(counts) >= 2 * NW
    starts = [sum(counts[:i]) for i in range(8)]
    g = G()
    vLane, vWave, vA, vB, vC = 1, 2, 3, 4, 5
    vK, vV = 6, 7
    Q = 8
    ACC = 12
    D0, D1 = 16, 20
    T0, T1 = 24, 25
    vM, vL, vPM = 26, 27, 28
    vAl = 29
    vOA = 30
    vE = 31
    AS = [32, 36]
    KR, VR = 40, 72
    vMt, vVT0, vVT1, vTkA, vTk, vRec, vRec2, vOut = 104, 105, 106, 107, 108, 109, 110, 111
    vML = 112
    RO = 116
    RM = RO + 32
    ST = RM + 16
    nvgpr = ST + (16 if stamp else 0)
    LO = KR
    MS = VR
    LS = VR + 16
    LDS_O = 0
    LDS_ML = NW * 1024
    lds_total = NW * 1024 + 2 * 4 * NW * 4
    tile_stride = NW * 8192

    def pack(vals):
        lo = sum(v << (8 * i) for i, v in enumerate(vals[:4]))
        hi = sum(v << (8 * i) for i, v in enumerate(vals[4:]))
        return lo, hi

    g("s_cmp_ge_u32 s2, 256")
    g("s_cbranch_scc1 L_end")
    if stamp:
        g("s_memrealtime s[60:61]")
    g("s_load_dwordx16 s[4:19], s[0:1], 0")
    g("s_load_dwordx2 s[20:21], s[0:1], 64")
    g(f"v_and_b32 v{vLane}, 63, v0")
    g(f"v_lshrrev_b32 v{vWave}, 6, v0")
    if a.xcdmap == 1:
        g("s_and_b32 s23, s2, 7")
        g("s_lshl_b32 s23, s23, 2")
        g("s_bfe_u32 s3, s2, 0x20003")
        g("s_add_u32 s23, s23, s3")
        g("s_lshr_b32 s37, s2, 5")
    elif a.xcdmap == 2:
        g("s_bfe_u32 s23, s2, 0x20001")
        g("s_lshl_b32 s23, s23, 3")
        g("s_bfe_u32 s3, s2, 0x30003")
        g("s_add_u32 s23, s23, s3")
        g("s_lshr_b32 s37, s2, 6")
        g("s_lshl_b32 s37, s37, 1")
        g("s_and_b32 s3, s2, 1")
        g("s_add_u32 s37, s37, s3")
    else:
        g("s_lshr_b32 s23, s2, 3")
        g("s_and_b32 s37, s2, 7")
    g(f"v_readfirstlane_b32 s22, v{vWave}")
    uniform = all(c == 32 for c in counts)
    if uniform:
        g("s_lshl_b32 s30, s37, 5")
        g("s_mov_b32 s31, 32")
    else:
        lo, hi = pack(starts)
        g(f"s_mov_b32 s28, 0x{lo:08x}")
        g(f"s_mov_b32 s29, 0x{hi:08x}")
        g("s_lshl_b32 s3, s37, 3")
        g("s_lshr_b64 s[30:31], s[28:29], s3")
        g("s_and_b32 s30, s30, 0xff")
        lo, hi = pack(counts)
        g(f"s_mov_b32 s28, 0x{lo:08x}")
        g(f"s_mov_b32 s29, 0x{hi:08x}")
        g("s_lshr_b64 s[28:29], s[28:29], s3")
        g("s_and_b32 s31, s28, 0xff")
    g("s_lshl_b32 s38, s23, 3")
    g("s_add_u32 s38, s38, s37")
    g("s_lshl_b32 s3, s23, 8")
    g("s_add_u32 s3, s3, s30")
    g("s_lshl_b32 s3, s3, 13")
    g("s_add_u32 s3, s3, 4096")
    if a.rotw:
        g(a.rotw.replace("DST", "s42"))
        g("s_add_u32 s42, s42, s22")
        g(f"s_and_b32 s42, s42, {NW-1}")
    else:
        g("s_mov_b32 s42, s22")
    g("s_sub_u32 s40, s31, s42")
    g("s_sub_u32 s40, s40, 1")
    g(f"s_lshr_b32 s40, s40, {LNW}")
    g("s_lshl_b32 s43, s42, 13")
    g("s_add_u32 s3, s3, s43")
    if a.rotr:
        g(a.rotr.replace("DST", "s46"))
        g("s_min_u32 s46, s46, s40")
        g(f"s_mul_i32 s43, s46, 0x{tile_stride:x}")
        g("s_add_u32 s3, s3, s43")
        g("s_sub_u32 s47, s40, s46")
        g("s_mov_b32 s48, s47")
        g(f"s_mul_i32 s49, s40, 0x{tile_stride:x}")
        g("s_sub_u32 s49, 0, s49")
    g(f"v_mov_b32 v{vA}, s3")
    g(f"v_lshl_add_u32 v{vV}, v{vLane}, 4, v{vA}")
    g(f"v_bfe_u32 v{vB}, v{vLane}, 2, 2")
    g(f"v_lshl_add_u32 v{vA}, v{vB}, 8, v{vA}")
    g(f"v_lshrrev_b32 v{vC}, 4, v{vLane}")
    g(f"v_lshl_add_u32 v{vA}, v{vC}, 6, v{vA}")
    g(f"v_and_b32 v{vK}, 3, v{vLane}")
    g(f"v_lshl_add_u32 v{vK}, v{vK}, 4, v{vA}")
    g("s_lshl_b32 s24, s23, 9")
    g(f"v_lshlrev_b32 v{vC}, 6, v{vC}")
    g(f"v_lshl_add_u32 v{vC}, v{vB}, 4, v{vC}")
    g(f"v_bfe_u32 v{vA}, v{vLane}, 1, 1")
    g(f"v_lshl_add_u32 v{vA}, v{vA}, 8, v{vC}")
    g(f"v_add_u32 v{vA}, s24, v{vA}")
    g(f"s_lshl_b32 s34, s23, {a.tkshift}")
    g(f"v_mov_b32 v{vTkA}, s34")
    g(f"s_cmp_eq_u32 s22, {CW}")
    g("s_cselect_b32 s41, 1, 0")
    g("s_waitcnt lgkmcnt(0)")
    g(f"global_load_dwordx4 {r4(Q)}, v{vA}, s[4:5]")

    def issue(isv, adv=True):
        ar, base, rb = (vV, "s[8:9]", VR) if isv else (vK, "s[6:7]", KR)
        for j in range(8):
            g(f"global_load_dwordx4 {r4(rb+4*j)}, v{ar}, {base} offset:{j*1024-4096}{ldf}")
        if adv:
            if a.rotr:
                c = 48 if isv else 47
                g(f"s_cmp_eq_u32 s{c}, 0")
                g(f"s_cselect_b32 s43, s49, 0x{tile_stride:x}")
                g(f"s_sub_u32 s{c}, s{c}, 1")
                g(f"v_add_u32 v{ar}, s43, v{ar}")
            else:
                g(f"v_add_u32 v{ar}, 0x{tile_stride:x}, v{ar}")

    g("s_cbranch_scc0 L_nocw0")
    g("s_lshl_b32 s26, s23, 8")
    g(f"v_lshrrev_b32 v{vA}, 4, v{vLane}")
    g(f"v_lshlrev_b32 v{vB}, 6, v{vA}")
    g(f"v_and_b32 v{vC}, 3, v{vLane}")
    g(f"v_lshl_add_u32 v{vB}, v{vC}, 4, v{vB}")
    g(f"v_add_u32 v{vB}, s26, v{vB}")
    g(f"global_load_dwordx4 {r4(D1)}, v{vB}, s[10:11]")
    g(f"v_lshlrev_b32 v{vRec2}, 3, v{vC}")
    g(f"v_and_b32 v{vC}, 15, v{vLane}")
    g(f"v_lshlrev_b32 v{vC}, 4, v{vC}")
    g(f"v_lshl_add_u32 v{vOut}, v{vA}, 2, v{vC}")
    g(f"v_add_u32 v{vC}, s26, v{vOut}")
    g(f"global_load_dword v{vVT1}, v{vC}, s[12:13]")
    g("s_load_dword s27, s[14:15], 0")
    g(f"v_add_u32 v{vOut}, s24, v{vOut}")
    g("s_lshl_b32 s32, s38, 11")
    g(f"v_lshlrev_b32 v{vRec}, 4, v{vLane}")
    g(f"v_add_u32 v{vRec}, s32, v{vRec}")
    g(f"v_add_u32 v{vRec2}, s32, v{vRec2}")
    g(f"v_mov_b32 v{vTk}, 1")
    if a.hand == 1:
        for r in range(4):
            g(f"v_mov_b32 v{RO+r}, -1")
        g(f"global_store_dwordx4 v{vRec}, {r4(RO)}, s[20:21] sc1")
        g("s_mov_b64 exec, 15")
        g(f"global_store_dwordx2 v{vRec2}, v[{RO}:{RO+1}], s[20:21] offset:1024 sc1")
        g("s_mov_b64 exec, -1")
    g.label("L_nocw0")
    issue(0)
    issue(1)
    g(f"s_mov_b32 s25, 0x{f32bits(C1):08x}")
    g(f"v_and_b32 v{vA}, 1, v{vLane}")
    g(f"v_lshlrev_b32 v{vA}, 4, v{vA}")
    g(f"v_mov_b32 v{vB}, 0xffff")
    g(f"v_lshlrev_b32 v{vPM}, v{vA}, v{vB}")
    for s in AS:
        for r in range(4):
            g(f"v_mov_b32 v{s+r}, 0")
    for r in range(4):
        g(f"v_mov_b32 v{ACC+r}, 0")
    g(f"v_lshlrev_b32 v{vOA}, 4, v0")
    g(f"v_mov_b32 v{vL}, 0")
    g(f"v_mov_b32 v{vM}, 0xff7fffff")
    g(f"v_and_b32 v{vE}, 3, v{vLane}")
    g(f"v_mul_u32_u24 v{vE}, {4*NW}, v{vE}")
    g("s_cmp_lg_u32 s41, 0")
    g("s_cbranch_scc0 L_loop")
    g("s_waitcnt vmcnt(16) lgkmcnt(0)")
    g(f"v_mfma_f32_16x16x32_bf16 {r4(D0)}, {r4(D1)}, {r4(Q)}, 0")
    g(f"v_lshlrev_b32 v{vVT0}, 16, v{vVT1}")
    g(f"v_and_b32 v{vVT1}, 0xffff0000, v{vVT1}")
    g("s_lshr_b32 s33, s23, 4")
    g("s_lshl_b32 s33, s33, 4")
    g("s_lshr_b32 s27, s27, s33")
    g("s_lshl_b32 s27, s27, 16")
    g("s_nop 3")
    g(f"v_add_f32_dpp v{vA}, v{D0+1}, v{D0} row_ror:12 {DPPALL}")
    g(f"v_add_f32_dpp v{vB}, v{D0+3}, v{D0+2} row_ror:12 {DPPALL}")
    g("s_nop 1")
    g(f"v_add_f32_dpp v{vA}, v{vB}, v{vA} row_ror:8 {DPPALL}")
    g("s_nop 1")
    g(f"v_mov_b32_dpp v{vMt}, v{vA} quad_perm:[0,1,2,3] row_mask:0xf bank_mask:0x1")
    g("s_nop 1")
    g(f"v_mov_b32_dpp v{vMt}, v{vA} row_ror:4 row_mask:0xf bank_mask:0x2")
    g("s_nop 1")
    g(f"v_mov_b32_dpp v{vMt}, v{vA} row_ror:8 row_mask:0xf bank_mask:0x4")
    g("s_nop 1")
    g(f"v_mov_b32_dpp v{vMt}, v{vA} row_ror:12 row_mask:0xf bank_mask:0x8")
    g(f"v_sub_f32 v{vB}, 1.0, s27")
    g(f"v_mul_f32 v{vB}, 0x{f32bits(MASKC):08x}, v{vB}")
    g(f"v_fma_f32 v{vMt}, v{vMt}, s25, v{vB}")
    if stamp:
        g("s_waitcnt vmcnt(15)")
        g("s_memrealtime s[62:63]")

    def xreduce(op, x, y):
        g("s_nop 1")
        g(f"{op}_dpp v{y}, v{x}, v{x} row_ror:4 {DPPALL}")
        g("s_nop 1")
        g(f"{op}_dpp v{x}, v{y}, v{y} row_ror:8 {DPPALL}")
        g(f"v_mov_b32 v{y}, v{x}")
        g("s_nop 1")
        g(f"v_permlane16_swap_b32 v{x}, v{y}")
        g(f"{op} v{x}, v{x}, v{y}")
        g(f"v_mov_b32 v{y}, v{x}")
        g("s_nop 1")
        g(f"v_permlane32_swap_b32 v{x}, v{y}")
        g(f"{op} v{x}, v{x}, v{y}")

    def ror(n):
        n %= 16
        return "quad_perm:[0,1,2,3]" if n == 0 else f"row_ror:{n}"

    def qk(younger, nxt):
        for j in range(8):
            D = D0 if j % 2 == 0 else D1
            g(f"s_waitcnt vmcnt({younger + 7 - j})")
            g(f"v_mfma_f32_16x16x32_bf16 {r4(D)}, {r4(KR+4*j)}, {r4(Q)}, 0")
            if j >= 1:
                jp = j - 1
                Dp = D0 if jp % 2 == 0 else D1
                q = jp & 3
                T = T0 if jp < 4 else T1
                x, y, z, w_ = [Dp + ((q + i) % 4) for i in range(4)]
                g("s_nop 6")
                g(f"v_add_f32_dpp v{vA}, v{y}, v{x} row_ror:12 {DPPALL}")
                g(f"v_add_f32_dpp v{vB}, v{w_}, v{z} row_ror:12 {DPPALL}")
                g("s_nop 1")
                g(f"v_add_f32_dpp v{T}, v{vB}, v{vA} row_ror:8 row_mask:0xf bank_mask:0x{1<<q:x}")
        if nxt:
            issue(0)
        else:
            g("s_nop 4")
        Dp = D1
        q = 3
        x, y, z, w_ = [Dp + ((q + i) % 4) for i in range(4)]
        g(f"v_add_f32_dpp v{vA}, v{y}, v{x} row_ror:12 {DPPALL}")
        g(f"v_add_f32_dpp v{vB}, v{w_}, v{z} row_ror:12 {DPPALL}")
        g("s_nop 1")
        g(f"v_add_f32_dpp v{T1}, v{vB}, v{vA} row_ror:8 row_mask:0xf bank_mask:0x{1<<q:x}")

    def softmax(last):
        g(f"v_max_f32 v{vA}, v{T0}, v{T1}")
        xreduce("v_max_f32", vA, vB)
        g(f"v_mul_f32 v{vA}, s25, v{vA}")
        g(f"v_max_f32 v{vA}, v{vA}, v{vM}")
        g(f"v_sub_f32 v{vAl}, v{vM}, v{vA}")
        g(f"v_mov_b32 v{vM}, v{vA}")
        g(f"v_exp_f32 v{vAl}, v{vAl}")
        g(f"v_fma_f32 v{T0}, v{T0}, s25, -v{vM}")
        g(f"v_fma_f32 v{T1}, v{T1}, s25, -v{vM}")
        g(f"v_exp_f32 v{T0}, v{T0}")
        g(f"v_exp_f32 v{T1}, v{T1}")
        g(f"v_mul_f32 v{vL}, v{vL}, v{vAl}")
        for r in range(4):
            qp = "[0,0,0,0]" if r < 2 else "[2,2,2,2]"
            g(f"v_mul_f32_dpp v{ACC+r}, v{vAl}, v{ACC+r} quad_perm:{qp} {DPPALL}")
        g(f"v_cvt_pk_bf16_f32 v{T0}, v{T0}, v{T0}")
        g(f"v_cvt_pk_bf16_f32 v{T1}, v{T1}, v{T1}")
        g(f"v_and_b32 v{T0}, v{T0}, v{vPM}")
        g(f"v_and_b32 v{T1}, v{T1}, v{vPM}")
        g(f"v_add_f32 v{vL}, v{vL}, v{T0}")
        g(f"v_add_f32 v{vL}, v{vL}, v{T1}")
        if last:
            xreduce("v_add_f32", vL, vB)
            g(f"v_lshl_add_u32 v{vB}, v{vWave}, 2, v{vE}")
            g(f"ds_write_b32 v{vB}, v{vM} offset:{LDS_ML}")
            g(f"ds_write_b32 v{vB}, v{vL} offset:{LDS_ML+16*NW}")

    def pv(younger):
        for j in range(8):
            A = AS[j % 2]
            T = T0 if j < 4 else T1
            q = j & 3
            for r in range(4):
                g(f"v_mov_b32_dpp v{A+r}, v{T} {ror(4*(r-q))} row_mask:0xf bank_mask:0x{1<<r:x}")
            g(f"s_waitcnt vmcnt({younger + 7 - j})")
            g("s_nop 0")
            g(f"v_mfma_f32_16x16x32_bf16 {r4(ACC)}, {r4(A)}, {r4(VR+4*j)}, {r4(ACC)}")

    def ticket():
        g("s_mov_b64 exec, 1")
        g(f"global_atomic_add v{vTk}, v{vTkA}, v{vTk}, s[18:19] sc0")
        g("s_mov_b64 exec, -1")

    g.label("L_loop")
    qk(8, True)
    softmax(False)
    pv(8)
    if a.hand == 1:
        g("s_cmp_eq_u32 s40, s41")
        g("s_cbranch_scc0 L_notk")
        ticket()
        g.label("L_notk")
    issue(1)
    g("s_sub_u32 s40, s40, 1")
    g("s_cmp_lg_u32 s40, 0")
    g("s_cbranch_scc1 L_loop")

    def finish_wave():
        g("s_nop 7")
        g(f"ds_write_b128 v{vOA}, {r4(ACC)} offset:{LDS_O}")

    def polls():
        for i in range(1, 8):
            g(f"v_xor_b32 v{vA}, {i*2048}, v{vRec2}")
            g(f"global_load_dwordx2 v[{RM+2*(i-1)}:{RM+2*(i-1)+1}], v{vA}, s[20:21] offset:1024 sc1")
        for i in range(1, 8):
            g(f"v_xor_b32 v{vA}, {i*2048}, v{vRec}")
            g(f"global_load_dwordx4 {r4(RO+4*(i-1))}, v{vA}, s[20:21] sc1")

    def combine(ms, ls, os_, waitfn, extra=None, own=False):
        n = len(ms)
        lst = list(ms) + ([extra] if extra is not None else [])
        g(f"v_max3_f32 v{vA}, v{lst[0]}, v{lst[1]}, v{lst[2]}")
        k = 3
        while k < len(lst):
            if k + 1 < len(lst):
                g(f"v_max3_f32 v{vA}, v{vA}, v{lst[k]}, v{lst[k+1]}")
                k += 2
            else:
                g(f"v_max_f32 v{vA}, v{vA}, v{lst[k]}")
                k += 1
        for m in lst:
            g(f"v_sub_f32 v{m}, v{m}, v{vA}")
        for m in lst:
            g(f"v_exp_f32 v{m}, v{m}")
        waitfn(-1)
        if extra is not None:
            g(f"v_fma_f32 v{vB}, v{ms[0]}, v{ls[0]}, v{extra}")
        else:
            g(f"v_mul_f32 v{vB}, v{ms[0]}, v{ls[0]}")
        for i in range(1, n):
            g(f"v_fmac_f32 v{vB}, v{ms[i]}, v{ls[i]}")
        for i in range(n):
            waitfn(i)
            for r in range(4):
                qp = "[0,0,0,0]" if r < 2 else "[2,2,2,2]"
                if i == 0:
                    g(f"v_mul_f32_dpp v{ACC+r}, v{ms[i]}, v{os_[i]+r} quad_perm:{qp} {DPPALL}")
                else:
                    g(f"v_fmac_f32_dpp v{ACC+r}, v{ms[i]}, v{os_[i]+r} quad_perm:{qp} {DPPALL}")
        if extra is not None:
            g(f"v_fmac_f32_dpp v{ACC}, v{extra}, v{vVT0} quad_perm:[0,0,0,0] {DPPALL}")
            g(f"v_fmac_f32_dpp v{ACC+1}, v{extra}, v{vVT1} quad_perm:[0,0,0,0] {DPPALL}")
            g(f"v_fmac_f32_dpp v{ACC+2}, v{extra}, v{vVT0} quad_perm:[2,2,2,2] {DPPALL}")
            g(f"v_fmac_f32_dpp v{ACC+3}, v{extra}, v{vVT1} quad_perm:[2,2,2,2] {DPPALL}")

    def local_merge():
        g("s_waitcnt lgkmcnt(0)")
        g("s_barrier")
        if stamp:
            g("s_memrealtime s[64:65]")
        for i in range(NW // 4):
            g(f"ds_read_b128 {r4(MS+4*i)}, v{vE} offset:{LDS_ML+16*i}")
        for i in range(NW // 4):
            g(f"ds_read_b128 {r4(LS+4*i)}, v{vE} offset:{LDS_ML+16*NW+16*i}")
        g(f"v_lshlrev_b32 v{vC}, 4, v{vLane}")
        for w in range(NW):
            g(f"ds_read_b128 {r4(LO+4*w)}, v{vC} offset:{LDS_O+1024*w}")
        if stamp:
            g("s_waitcnt lgkmcnt(0)")
        g(f"s_waitcnt lgkmcnt({min(15, NW + NW // 4)})")
        def w1(i):
            if i == -1:
                g(f"s_waitcnt lgkmcnt({min(15, NW)})")
            else:
                g(f"s_waitcnt lgkmcnt({min(15, NW-1-i)})")
        combine([MS + i for i in range(NW)], [LS + i for i in range(NW)], [LO + 4 * i for i in range(NW)], w1)

    def put_stamps(final):
        if not stamp:
            return
        if not final:
            g("s_memrealtime s[66:67]")
            g("s_lshl_b32 s44, s2, 6")
            g("s_add_u32 s44, s44, 0x100000")
            g(f"v_mov_b32 v{ST}, s44")
            g("s_getreg_b32 s50, hwreg(HW_REG_XCC_ID)")
            g("s_getreg_b32 s51, hwreg(HW_REG_HW_ID)")
            g("s_waitcnt lgkmcnt(0)")
            for i, sr in enumerate([60, 61, 62, 63, 64, 65, 66, 67, 50, 51]):
                g(f"v_mov_b32 v{ST+2+i}, s{sr}")
            g(f"global_store_dwordx4 v{ST}, {r4(ST+2)}, s[20:21]")
            g(f"global_store_dwordx4 v{ST}, {r4(ST+6)}, s[20:21] offset:16")
            g(f"global_store_dwordx2 v{ST}, v[{ST+10}:{ST+11}], s[20:21] offset:40")
            g(f"v_mov_b32 v{ST+2}, 0")
            g(f"v_mov_b32 v{ST+3}, 0")
            g(f"global_store_dwordx2 v{ST}, v[{ST+2}:{ST+3}], s[20:21] offset:32")
            g(f"global_store_dwordx2 v{ST}, v[{ST+2}:{ST+3}], s[20:21] offset:48")
        else:
            g("s_waitcnt vmcnt(0)")
            g("s_memrealtime s[66:67]")
            g("s_waitcnt lgkmcnt(0)")
            g(f"v_mov_b32 v{ST+2}, s66")
            g(f"v_mov_b32 v{ST+3}, s67")
            g(f"global_store_dwordx2 v{ST}, v[{ST+2}:{ST+3}], s[20:21] offset:32")
            g(f"v_mov_b32 v{ST+2}, s45")
            g(f"v_mov_b32 v{ST+3}, 0")
            g(f"global_store_dwordx2 v{ST}, v[{ST+2}:{ST+3}], s[20:21] offset:48")

    def publish(sanitize):
        if sanitize:
            for r in range(4):
                g(f"v_min_u32 v{ACC+r}, -2, v{ACC+r}")
        g(f"global_store_dwordx4 v{vRec}, {r4(ACC)}, s[20:21] sc1")
        if sanitize:
            g(f"v_min_u32 v{vML}, -2, v{vA}")
            g(f"v_min_u32 v{vML+1}, -2, v{vB}")
        else:
            g(f"v_mov_b32 v{vML}, v{vA}")
            g(f"v_mov_b32 v{vML+1}, v{vB}")
        g("s_mov_b64 exec, 15")
        g(f"global_store_dwordx2 v{vRec2}, v[{vML}:{vML+1}], s[20:21] offset:1024 sc1")
        g("s_mov_b64 exec, -1")

    def output():
        g(f"v_rcp_f32 v{vB}, v{vB}")
        g("s_nop 1")
        g(f"v_mul_f32_dpp v{ACC}, v{vB}, v{ACC} quad_perm:[1,1,1,1] {DPPALL}")
        g(f"v_mul_f32_dpp v{ACC+1}, v{vB}, v{ACC+1} quad_perm:[1,1,1,1] {DPPALL}")
        g(f"v_mul_f32_dpp v{ACC+2}, v{vB}, v{ACC+2} quad_perm:[3,3,3,3] {DPPALL}")
        g(f"v_mul_f32_dpp v{ACC+3}, v{vB}, v{ACC+3} quad_perm:[3,3,3,3] {DPPALL}")
        g(f"v_cvt_pk_bf16_f32 v{D0}, v{ACC}, v{ACC+1}")
        g(f"v_cvt_pk_bf16_f32 v{D0+1}, v{ACC+2}, v{ACC+3}")
        of = (" " + a.outflags) if a.outflags else ""
        g(f"global_store_dword v{vOut}, v{D0}, s[16:17]{of}")
        g(f"global_store_dword v{vOut}, v{D0+1}, s[16:17] offset:256{of}")

    def final_merge():
        g(f"v_mov_b32 v{vML}, v{vA}")
        g(f"v_mov_b32 v{vML+1}, v{vB}")
        ms = [vML] + [RM + 2 * i for i in range(7)]
        ls = [vML + 1] + [RM + 2 * i + 1 for i in range(7)]
        os_ = [ACC] + [RO + 4 * i for i in range(7)]
        def w2(i):
            if i == -1:
                g("s_nop 0")
        combine(ms, ls, os_, w2, extra=vMt)
        output()

    g("s_cmp_lg_u32 s41, 0")
    g("s_cbranch_scc1 L_cw_last")
    qk(8, False)
    softmax(True)
    pv(0)
    finish_wave()
    g("s_waitcnt lgkmcnt(0)")
    g("s_barrier")
    g("s_endpgm")
    g.label("L_cw_last")
    g("s_mov_b32 s45, 0")
    if a.hand == 1:
        qk(9, False)
        softmax(True)
        g("s_waitcnt vmcnt(8)")
        g(f"v_readfirstlane_b32 s36, v{vTk}")
        g("s_nop 3")
        g("s_cmp_eq_u32 s36, 7")
        g("s_cbranch_scc1 L_cons")
        pv(0)
        finish_wave()
        local_merge()
        publish(True)
        put_stamps(False)
        g("s_endpgm")
        g.label("L_cons")
        polls()
        pv(14)
        finish_wave()
        local_merge()
        g(f"v_mov_b32 v{vML}, v{vA}")
        g(f"v_mov_b32 v{vML+1}, v{vB}")
        put_stamps(False)
        g.label("L_poll")
        g("s_waitcnt vmcnt(0)")
        regs = [RM + i for i in range(14)] + [RO + i for i in range(28)]
        g(f"v_max3_u32 v{vA}, v{regs[0]}, v{regs[1]}, v{regs[2]}")
        g(f"v_max3_u32 v{vB}, v{regs[3]}, v{regs[4]}, v{regs[5]}")
        k = 6
        tog = 0
        while k < len(regs):
            t = vA if tog == 0 else vB
            g(f"v_max3_u32 v{t}, v{t}, v{regs[k]}, v{regs[k+1]}")
            k += 2
            tog ^= 1
        g(f"v_max_u32 v{vA}, v{vA}, v{vB}")
        g(f"v_cmp_eq_u32 vcc, -1, v{vA}")
        g("s_cbranch_vccz L_ready")
        g("s_add_u32 s45, s45, 1")
        g("s_cmp_gt_u32 s45, 0x400000")
        g("s_cbranch_scc1 L_ready")
        polls()
        g("s_branch L_poll")
        g.label("L_ready")
        ms = [vML] + [RM + 2 * i for i in range(7)]
        ls = [vML + 1] + [RM + 2 * i + 1 for i in range(7)]
        os_ = [ACC] + [RO + 4 * i for i in range(7)]
        def w2(i):
            if i == -1:
                g("s_nop 0")
        combine(ms, ls, os_, w2, extra=vMt)
        output()
        put_stamps(True)
        g("s_endpgm")
    else:
        qk(8, False)
        softmax(True)
        pv(0)
        finish_wave()
        local_merge()
        publish(False)
        g("s_waitcnt vmcnt(0)")
        ticket()
        g("s_waitcnt vmcnt(0)")
        g(f"v_readfirstlane_b32 s36, v{vTk}")
        g("s_nop 3")
        put_stamps(False)
        g("s_cmp_lg_u32 s36, 7")
        g("s_cbranch_scc1 L_end")
        polls()
        ms = [vML] + [RM + 2 * i for i in range(7)]
        ls = [vML + 1] + [RM + 2 * i + 1 for i in range(7)]
        os_ = [ACC] + [RO + 4 * i for i in range(7)]
        g("s_waitcnt vmcnt(7)")
        def w3(i):
            if i == -1:
                g("s_nop 0")
            elif i >= 1:
                g(f"s_waitcnt vmcnt({7-i})")
        combine(ms, ls, os_, w3, extra=vMt)
        output()
        put_stamps(True)
    g.label("L_end")
    g("s_endpgm")

    maxv = 512 // (NW // 4)
    assert nvgpr <= min(256, maxv), nvgpr
    lds = max(lds_total, a.lds)
    nv = a.vgpr if a.vgpr else nvgpr
    nv = max(nv, nvgpr)
    out = HEADER
    out += f"; @launch grid=(256,1,1) block=({NW*64},1,1) lds={lds}\n"
    out += f""".amdgcn_target "amdgcn-amd-amdhsa--gfx950"
.text
.globl {NAME}_kernel
.p2align 8
.type {NAME}_kernel,@function
{NAME}_kernel:
"""
    out += g.text()
    out += f""".section .rodata,"a"
.p2align 6
.amdhsa_kernel {NAME}_kernel
  .amdhsa_next_free_vgpr {nv}
  .amdhsa_next_free_sgpr 96
  .amdhsa_accum_offset {(nv + 3) // 4 * 4}
  .amdhsa_group_segment_fixed_size 0
  .amdhsa_kernarg_size 72
  .amdhsa_user_sgpr_count 2
  .amdhsa_user_sgpr_kernarg_segment_ptr 1
  .amdhsa_system_sgpr_workgroup_id_x 1
.end_amdhsa_kernel
"""
    return out


if __name__ == "__main__":
    ap = argparse.ArgumentParser()
    ap.add_argument("-o", default=None)
    ap.add_argument("--ldflags", default="nt")
    ap.add_argument("--outflags", default="")
    ap.add_argument("--nw", type=int, default=8)
    ap.add_argument("--cw", type=int, default=-1)
    ap.add_argument("--xcdmap", type=int, default=1)
    ap.add_argument("--counts", default="32,32,32,32,32,32,32,32")
    ap.add_argument("--hand", type=int, default=1)
    ap.add_argument("--tkshift", type=int, default=3)
    ap.add_argument("--rotw", default="")
    ap.add_argument("--rotr", default="")
    ap.add_argument("--lds", type=int, default=90000)
    ap.add_argument("--vgpr", type=int, default=0)
    ap.add_argument("--stamp", type=int, default=0)
    a = ap.parse_args()
    s = gen(a)
    if a.o:
        open(a.o, "w").write(s)
    else:
        sys.stdout.write(s)
```

```python
import sys, argparse, struct

NAME = "standalone__tree_speculative_verify_tree_attention_over_candidate_token_tree__decode"

HEADER = """; Kernarg layout for this problem (72 bytes, ptrs only, base s[0:1]):
"""

def f32bits(x):
    return struct.unpack("<I", struct.pack("<f", x))[0]

C1 = (128 ** -0.5) * 1.4426950408889634
MASKC = -1.0e9 * 1.4426950408889634
DPPALL = "row_mask:0xf bank_mask:0xf"


class G:
    def __init__(self):
        self.l = []
    def __call__(self, s):
        self.l.append("    " + s)
    def label(self, s):
        self.l.append(s + ":")
    def text(self):
        return "\n".join(self.l) + "\n"


def r4(b):
    return f"v[{b}:{b+3}]"


def gen(a):
    NW = a.nw
    LNW = NW.bit_length() - 1
    CW = a.cw if a.cw >= 0 else NW - 1
    ldf = (" " + a.ldflags) if a.ldflags else ""
    stamp = a.stamp
    counts = [int(x) for x in a.counts.split(",")]
    assert len(counts) == 8 and sum(counts) == 256 and min(counts) >= 2 * NW
    starts = [sum(counts[:i]) for i in range(8)]
    g = G()
    vLane, vWave, vA, vB, vC = 1, 2, 3, 4, 5
    vK, vV = 6, 7
    Q = 8
    ACC = 12
    D0, D1 = 16, 20
    T0, T1 = 24, 25
    vM, vL, vPM = 26, 27, 28
    vAl = 29
    vOA = 30
    vE = 31
    AS = [32, 36]
    KR, VR = 40, 72
    vMt, vVT0, vVT1, vTkA, vTk, vRec, vRec2, vOut = 104, 105, 106, 107, 108, 109, 110, 111
    vML = 112
    RO = 116
    RM = RO + 32
    ST = RM + 16
    nvgpr = ST + (16 if stamp else 0)
    LO = KR
    MS = VR
    LS = VR + 16
    LDS_O = 0
    LDS_ML = NW * 1024
    lds_total = NW * 1024 + 2 * 4 * NW * 4
    pat = a.pat
    assert len(pat) == 13 and sorted(pat) == sorted("lljjjwwwttsss"), pat
    assert NW == 8
    pos = {c: [8 + i for i, x in enumerate(pat) if x == c] for c in "ljwts"}
    def spread(v, c):
        return sum(((v >> i) & 1) << b for i, b in enumerate(pos[c]))
    jorder = [int(x) for x in a.jorder]
    joff = [spread(j, "j") for j in jorder]
    jb = []
    b = 4096 + joff[0]
    for j in range(8):
        if not (-4096 <= joff[j] - b <= 4095):
            b = joff[j] + 4096
        jb.append(b)
    ta = spread(1, "t")
    tb = spread(2, "t") - ta
    d_even = (ta + jb[0] - jb[7]) & 0xffffffff
    d_odd = (tb + jb[0] - jb[7]) & 0xffffffff

    def pack(vals):
        lo = sum(v << (8 * i) for i, v in enumerate(vals[:4]))
        hi = sum(v << (8 * i) for i, v in enumerate(vals[4:]))
        return lo, hi

    g("s_cmp_ge_u32 s2, 256")
    g("s_cbranch_scc1 L_end")
    if stamp:
        g("s_memrealtime s[60:61]")
    if a.pace:
        g("s_memrealtime s[58:59]")
    g("s_load_dwordx16 s[4:19], s[0:1], 0")
    g("s_load_dwordx2 s[20:21], s[0:1], 64")
    g(f"v_and_b32 v{vLane}, 63, v0")
    g(f"v_lshrrev_b32 v{vWave}, 6, v0")
    if a.xcdmap == 1:
        g("s_and_b32 s23, s2, 7")
        g("s_lshl_b32 s23, s23, 2")
        g("s_bfe_u32 s3, s2, 0x20003")
        g("s_add_u32 s23, s23, s3")
        g("s_lshr_b32 s37, s2, 5")
    elif a.xcdmap == 2:
        g("s_bfe_u32 s23, s2, 0x20001")
        g("s_lshl_b32 s23, s23, 3")
        g("s_bfe_u32 s3, s2, 0x30003")
        g("s_add_u32 s23, s23, s3")
        g("s_lshr_b32 s37, s2, 6")
        g("s_lshl_b32 s37, s37, 1")
        g("s_and_b32 s3, s2, 1")
        g("s_add_u32 s37, s37, s3")
    elif a.xcdmap == 3:
        g("s_bfe_u32 s23, s2, 0x20001")
        g("s_lshl_b32 s23, s23, 3")
        g("s_bfe_u32 s3, s2, 0x30003")
        g("s_add_u32 s23, s23, s3")
        g("s_lshr_b32 s37, s2, 6")
        g("s_and_b32 s3, s2, 1")
        g("s_lshl_b32 s3, s3, 2")
        g("s_add_u32 s37, s37, s3")
    elif a.xcdmap == 4:
        g("s_bfe_u32 s23, s2, 0x20001")
        g("s_lshl_b32 s23, s23, 3")
        g("s_lshr_b32 s3, s2, 5")
        g("s_add_u32 s23, s23, s3")
        g("s_bfe_u32 s37, s2, 0x20003")
        g("s_and_b32 s3, s2, 1")
        g("s_lshl_b32 s3, s3, 2")
        g("s_add_u32 s37, s37, s3")
    elif a.xcdmap == 5:
        g("s_and_b32 s23, s2, 7")
        g("s_lshl_b32 s23, s23, 2")
        g("s_lshr_b32 s3, s2, 6")
        g("s_add_u32 s23, s23, s3")
        g("s_bfe_u32 s37, s2, 0x30003")
    else:
        g("s_lshr_b32 s23, s2, 3")
        g("s_and_b32 s37, s2, 7")
    g(f"v_readfirstlane_b32 s22, v{vWave}")
    g("s_lshl_b32 s38, s23, 3")
    g("s_add_u32 s38, s38, s37")
    g("s_lshl_b32 s3, s23, 21")
    g(f"s_add_u32 s3, s3, {jb[0]}")
    g("s_mov_b32 s40, 3")
    def sspread(src, c):
        p = pos[c]
        if p == list(range(p[0], p[0] + len(p))):
            g(f"s_lshl_b32 s43, {src}, {p[0]}")
            g("s_add_u32 s3, s3, s43")
        else:
            for i, b in enumerate(p):
                g(f"s_bfe_u32 s43, {src}, 0x{(1<<16)|i:x}")
                g(f"s_lshl_b32 s43, s43, {b}")
                g("s_add_u32 s3, s3, s43")
    if int(a.wmask, 16):
        m = int(a.wmask, 16)
        g("s_and_b32 s48, s2, 7")
        g(f"s_mov_b32 s49, 0x{m & 0xffffffff:x}")
        g("s_cmp_ge_u32 s48, 4")
        g(f"s_cselect_b32 s49, 0x{m >> 32:x}, s49")
        g("s_and_b32 s48, s48, 3")
        g("s_lshl_b32 s48, s48, 3")
        g("s_add_u32 s48, s48, s22")
        g("s_lshr_b32 s49, s49, s48")
        g("s_and_b32 s49, s49, 1")
    if not a.oracle:
        sspread("s37", "s")
        sspread("s22", "w")
    else:
        g("s_lshl_b32 s54, s2, 3")
        g("s_add_u32 s54, s54, s22")
        g("s_lshl_b32 s54, s54, 3")
        g("s_add_u32 s54, s54, 0x200000")
    g(f"s_mov_b32 s46, 0x{d_even:x}")
    g(f"s_mov_b32 s47, 0x{d_even:x}")
    lp = pos["l"]
    g(f"v_bfe_u32 v{vB}, v{vLane}, 2, 2")
    g(f"v_lshrrev_b32 v{vC}, 4, v{vLane}")
    if lp == [8, 9]:
        g(f"v_lshl_add_u32 v{vV}, v{vLane}, 4, s3")
        g(f"v_lshl_add_u32 v{vA}, v{vB}, 8, s3")
    else:
        g(f"v_and_b32 v{vV}, 15, v{vLane}")
        g(f"v_lshl_add_u32 v{vV}, v{vV}, 4, s3")
        g(f"v_bfe_u32 v{vA}, v{vLane}, 4, 1")
        g(f"v_lshl_add_u32 v{vV}, v{vA}, {lp[0]}, v{vV}")
        g(f"v_bfe_u32 v{vA}, v{vLane}, 5, 1")
        g(f"v_lshl_add_u32 v{vV}, v{vA}, {lp[1]}, v{vV}")
        g(f"v_bfe_u32 v{vA}, v{vLane}, 2, 1")
        g(f"v_lshl_add_u32 v{vK}, v{vA}, {lp[0]}, s3")
        g(f"v_bfe_u32 v{vA}, v{vLane}, 3, 1")
        g(f"v_lshl_add_u32 v{vA}, v{vA}, {lp[1]}, v{vK}")
    g(f"v_lshl_add_u32 v{vA}, v{vC}, 6, v{vA}")
    g(f"v_and_b32 v{vK}, 3, v{vLane}")
    g(f"v_lshl_add_u32 v{vK}, v{vK}, 4, v{vA}")
    g("s_lshl_b32 s24, s23, 9")
    g(f"v_lshlrev_b32 v{vC}, 6, v{vC}")
    g(f"v_lshl_add_u32 v{vC}, v{vB}, 4, v{vC}")
    g(f"v_bfe_u32 v{vA}, v{vLane}, 1, 1")
    g(f"v_lshl_add_u32 v{vA}, v{vA}, 8, v{vC}")
    g(f"v_add_u32 v{vA}, s24, v{vA}")
    g(f"s_lshl_b32 s34, s23, {a.tkshift}")
    g(f"v_mov_b32 v{vTkA}, s34")
    g(f"s_cmp_eq_u32 s22, {CW}")
    g("s_cselect_b32 s41, 1, 0")
    g("s_waitcnt lgkmcnt(0)")
    g(f"global_load_dwordx4 {r4(Q)}, v{vA}, s[4:5]")
    if a.pace:
        g(f"s_add_u32 s57, s58, {a.poff}")
        g(f"s_add_u32 s58, s57, {1 if a.pfirst else -1}")
        g(f"s_cmp_eq_u32 s22, {CW}")
    if a.oracle:
        msk = sum(1 << b for b in pos["s"] + pos["w"])
        g("s_load_dwordx2 s[52:53], s[20:21], s54")
        g("s_waitcnt lgkmcnt(0)")
        g(f"s_and_b32 s52, s52, 0x{msk:x}")
        g(f"s_and_b32 s53, s53, 0x{msk:x}")
        g(f"v_add_u32 v{vK}, s52, v{vK}")
        g(f"v_add_u32 v{vV}, s53, v{vV}")
        g(f"s_cmp_eq_u32 s22, {CW}")

    class St: pass
    st = St()
    st.W = a.win
    st.n = 0
    def issue1(idx):
        idx %= 16
        isv, j = idx >= 8, idx % 8
        ar, base, rb = (vV, "s[8:9]", VR) if isv else (vK, "s[6:7]", KR)
        g(f"global_load_dwordx4 {r4(rb+4*j)}, v{ar}, {base} offset:{joff[j]-jb[j]}{ldf}")
        if j < 7:
            if jb[j + 1] != jb[j]:
                g(f"v_add_u32 v{ar}, 0x{(jb[j+1] - jb[j]) & 0xffffffff:x}, v{ar}")
        elif d_even == d_odd:
            g(f"v_add_u32 v{ar}, 0x{d_even:x}, v{ar}")
        else:
            sd = "s47" if isv else "s46"
            g(f"v_add_u32 v{ar}, {sd}, v{ar}")
            g(f"s_xor_b32 {sd}, {sd}, 0x{d_even ^ d_odd:x}")

    g("s_cbranch_scc0 L_nocw0")
    g("s_lshl_b32 s26, s23, 8")
    g(f"v_lshrrev_b32 v{vA}, 4, v{vLane}")
    g(f"v_lshlrev_b32 v{vB}, 6, v{vA}")
    g(f"v_and_b32 v{vC}, 3, v{vLane}")
    g(f"v_lshl_add_u32 v{vB}, v{vC}, 4, v{vB}")
    g(f"v_add_u32 v{vB}, s26, v{vB}")
    g(f"global_load_dwordx4 {r4(D1)}, v{vB}, s[10:11]")
    g(f"v_lshlrev_b32 v{vRec2}, 3, v{vC}")
    g(f"v_and_b32 v{vC}, 15, v{vLane}")
    g(f"v_lshlrev_b32 v{vC}, 4, v{vC}")
    g(f"v_lshl_add_u32 v{vOut}, v{vA}, 2, v{vC}")
    g(f"v_add_u32 v{vC}, s26, v{vOut}")
    g(f"global_load_dword v{vVT1}, v{vC}, s[12:13]")
    g("s_load_dword s27, s[14:15], 0")
    g(f"v_add_u32 v{vOut}, s24, v{vOut}")
    g("s_lshl_b32 s32, s38, 11")
    g(f"v_lshlrev_b32 v{vRec}, 4, v{vLane}")
    g(f"v_add_u32 v{vRec}, s32, v{vRec}")
    g(f"v_add_u32 v{vRec2}, s32, v{vRec2}")
    g(f"v_mov_b32 v{vTk}, 1")
    if a.hand == 1:
        for r in range(4):
            g(f"v_mov_b32 v{RO+r}, -1")
        g(f"global_store_dwordx4 v{vRec}, {r4(RO)}, s[20:21] sc1")
        g("s_mov_b64 exec, 15")
        g(f"global_store_dwordx2 v{vRec2}, v[{RO}:{RO+1}], s[20:21] offset:1024 sc1")
        g("s_mov_b64 exec, -1")
    def prologue(sfx):
        for i in range(st.W):
            issue1(i)
        g(f"s_mov_b32 s25, 0x{f32bits(C1):08x}")
        g(f"v_and_b32 v{vA}, 1, v{vLane}")
        g(f"v_lshlrev_b32 v{vA}, 4, v{vA}")
        g(f"v_mov_b32 v{vB}, 0xffff")
        g(f"v_lshlrev_b32 v{vPM}, v{vA}, v{vB}")
        for s in AS:
            for r in range(4):
                g(f"v_mov_b32 v{s+r}, 0")
        for r in range(4):
            g(f"v_mov_b32 v{ACC+r}, 0")
        g(f"v_lshlrev_b32 v{vOA}, 4, v0")
        g(f"v_mov_b32 v{vL}, 0")
        g(f"v_mov_b32 v{vM}, 0xff7fffff")
        g(f"v_and_b32 v{vE}, 3, v{vLane}")
        g(f"v_mul_u32_u24 v{vE}, {4*NW}, v{vE}")
        g("s_cmp_lg_u32 s41, 0")
        g(f"s_cbranch_scc0 L_loop{sfx}")
        g(f"s_waitcnt vmcnt({st.W}) lgkmcnt(0)")
        g(f"v_mfma_f32_16x16x32_bf16 {r4(D0)}, {r4(D1)}, {r4(Q)}, 0")
        g(f"v_lshlrev_b32 v{vVT0}, 16, v{vVT1}")
        g(f"v_and_b32 v{vVT1}, 0xffff0000, v{vVT1}")
        g("s_lshr_b32 s33, s23, 4")
        g("s_lshl_b32 s33, s33, 4")
        g("s_lshr_b32 s27, s27, s33")
        g("s_lshl_b32 s27, s27, 16")
        g("s_nop 3")
        g(f"v_add_f32_dpp v{vA}, v{D0+1}, v{D0} row_ror:12 {DPPALL}")
        g(f"v_add_f32_dpp v{vB}, v{D0+3}, v{D0+2} row_ror:12 {DPPALL}")
        g("s_nop 1")
        g(f"v_add_f32_dpp v{vA}, v{vB}, v{vA} row_ror:8 {DPPALL}")
        g("s_nop 1")
        g(f"v_mov_b32_dpp v{vMt}, v{vA} quad_perm:[0,1,2,3] row_mask:0xf bank_mask:0x1")
        g("s_nop 1")
        g(f"v_mov_b32_dpp v{vMt}, v{vA} row_ror:4 row_mask:0xf bank_mask:0x2")
        g("s_nop 1")
        g(f"v_mov_b32_dpp v{vMt}, v{vA} row_ror:8 row_mask:0xf bank_mask:0x4")
        g("s_nop 1")
        g(f"v_mov_b32_dpp v{vMt}, v{vA} row_ror:12 row_mask:0xf bank_mask:0x8")
        g(f"v_sub_f32 v{vB}, 1.0, s27")
        g(f"v_mul_f32 v{vB}, 0x{f32bits(MASKC):08x}, v{vB}")
        g(f"v_fma_f32 v{vMt}, v{vMt}, s25, v{vB}")
        if stamp:
            g(f"s_waitcnt vmcnt({st.W-1})")
            g("s_memrealtime s[62:63]")


    def xreduce(op, x, y):
        g("s_nop 1")
        g(f"{op}_dpp v{y}, v{x}, v{x} row_ror:4 {DPPALL}")
        g("s_nop 1")
        g(f"{op}_dpp v{x}, v{y}, v{y} row_ror:8 {DPPALL}")
        g(f"v_mov_b32 v{y}, v{x}")
        g("s_nop 1")
        g(f"v_permlane16_swap_b32 v{x}, v{y}")
        g(f"{op} v{x}, v{x}, v{y}")
        g(f"v_mov_b32 v{y}, v{x}")
        g("s_nop 1")
        g(f"v_permlane32_swap_b32 v{x}, v{y}")
        g(f"{op} v{x}, v{x}, v{y}")

    def ror(n):
        n %= 16
        return "quad_perm:[0,1,2,3]" if n == 0 else f"row_ror:{n}"

    def wcount(i, last):
        W = st.W
        return min(W - 1, 15 - i) if last else W - 1

    def refill(i, last):
        W = st.W
        if last and i + W >= 16:
            return 0
        if a.pace:
            if i % a.pstep == 0:
                g("s_waitcnt lgkmcnt(0)")
                g("s_sub_u32 s56, s58, s57")
                g("s_cmp_lt_i32 s56, 0")
                g("s_cselect_b64 vcc, -1, 0")
                g(f"s_add_u32 s57, s57, {a.pace}")
            st.n += 1
            g(f"s_cbranch_vccz L_sk{st.n}")
            g(f"s_waitcnt vmcnt({a.ws-1})")
            g.label(f"L_sk{st.n}")
        issue1(i + W)
        if a.pace and i % a.pstep == a.pstep - 1:
            g("s_memrealtime s[58:59]")
        return 1

    def qk(last):
        for j in range(8):
            D = D0 if j % 2 == 0 else D1
            g(f"s_waitcnt vmcnt({wcount(j, last)})")
            g(f"v_mfma_f32_16x16x32_bf16 {r4(D)}, {r4(KR+4*j)}, {r4(Q)}, 0")
            n = refill(j, last)
            if j >= 1:
                jp = j - 1
                Dp = D0 if jp % 2 == 0 else D1
                q = jp & 3
                T = T0 if jp < 4 else T1
                x, y, z, w_ = [Dp + ((q + i) % 4) for i in range(4)]
                g(f"s_nop {6-n}")
                g(f"v_add_f32_dpp v{vA}, v{y}, v{x} row_ror:12 {DPPALL}")
                g(f"v_add_f32_dpp v{vB}, v{w_}, v{z} row_ror:12 {DPPALL}")
                g("s_nop 1")
                g(f"v_add_f32_dpp v{T}, v{vB}, v{vA} row_ror:8 row_mask:0xf bank_mask:0x{1<<q:x}")
        Dp = D1
        q = 3
        x, y, z, w_ = [Dp + ((q + i) % 4) for i in range(4)]
        g(f"v_add_f32_dpp v{vA}, v{y}, v{x} row_ror:12 {DPPALL}")
        g(f"v_add_f32_dpp v{vB}, v{w_}, v{z} row_ror:12 {DPPALL}")
        g("s_nop 1")
        g(f"v_add_f32_dpp v{T1}, v{vB}, v{vA} row_ror:8 row_mask:0xf bank_mask:0x{1<<q:x}")

    def softmax(last):
        g(f"v_max_f32 v{vA}, v{T0}, v{T1}")
        xreduce("v_max_f32", vA, vB)
        g(f"v_mul_f32 v{vA}, s25, v{vA}")
        g(f"v_max_f32 v{vA}, v{vA}, v{vM}")
        g(f"v_sub_f32 v{vAl}, v{vM}, v{vA}")
        g(f"v_mov_b32 v{vM}, v{vA}")
        g(f"v_exp_f32 v{vAl}, v{vAl}")
        g(f"v_fma_f32 v{T0}, v{T0}, s25, -v{vM}")
        g(f"v_fma_f32 v{T1}, v{T1}, s25, -v{vM}")
        g(f"v_exp_f32 v{T0}, v{T0}")
        g(f"v_exp_f32 v{T1}, v{T1}")
        g(f"v_mul_f32 v{vL}, v{vL}, v{vAl}")
        for r in range(4):
            qp = "[0,0,0,0]" if r < 2 else "[2,2,2,2]"
            g(f"v_mul_f32_dpp v{ACC+r}, v{vAl}, v{ACC+r} quad_perm:{qp} {DPPALL}")
        g(f"v_cvt_pk_bf16_f32 v{T0}, v{T0}, v{T0}")
        g(f"v_cvt_pk_bf16_f32 v{T1}, v{T1}, v{T1}")
        g(f"v_and_b32 v{T0}, v{T0}, v{vPM}")
        g(f"v_and_b32 v{T1}, v{T1}, v{vPM}")
        g(f"v_add_f32 v{vL}, v{vL}, v{T0}")
        g(f"v_add_f32 v{vL}, v{vL}, v{T1}")
        if last:
            xreduce("v_add_f32", vL, vB)
            g(f"v_lshl_add_u32 v{vB}, v{vWave}, 2, v{vE}")
            g(f"ds_write_b32 v{vB}, v{vM} offset:{LDS_ML}")
            g(f"ds_write_b32 v{vB}, v{vL} offset:{LDS_ML+16*NW}")

    def pv(last):
        for j in range(8):
            A = AS[j % 2]
            T = T0 if j < 4 else T1
            q = j & 3
            for r in range(4):
                g(f"v_mov_b32_dpp v{A+r}, v{T} {ror(4*(r-q))} row_mask:0xf bank_mask:0x{1<<r:x}")
            g(f"s_waitcnt vmcnt({wcount(8+j, last)})")
            g("s_nop 0")
            g(f"v_mfma_f32_16x16x32_bf16 {r4(ACC)}, {r4(A)}, {r4(VR+4*j)}, {r4(ACC)}")
            refill(8 + j, last)

    def ticket():
        g("s_mov_b64 exec, 1")
        g(f"global_atomic_add v{vTk}, v{vTkA}, v{vTk}, s[18:19] sc0")
        g("s_mov_b64 exec, -1")

    def finish_wave():
        g("s_nop 7")
        g(f"ds_write_b128 v{vOA}, {r4(ACC)} offset:{LDS_O}")

    def polls():
        for i in range(1, 8):
            g(f"v_xor_b32 v{vA}, {i*2048}, v{vRec2}")
            g(f"global_load_dwordx2 v[{RM+2*(i-1)}:{RM+2*(i-1)+1}], v{vA}, s[20:21] offset:1024 sc1")
        for i in range(1, 8):
            g(f"v_xor_b32 v{vA}, {i*2048}, v{vRec}")
            g(f"global_load_dwordx4 {r4(RO+4*(i-1))}, v{vA}, s[20:21] sc1")

    def combine(ms, ls, os_, waitfn, extra=None, own=False):
        n = len(ms)
        lst = list(ms) + ([extra] if extra is not None else [])
        g(f"v_max3_f32 v{vA}, v{lst[0]}, v{lst[1]}, v{lst[2]}")
        k = 3
        while k < len(lst):
            if k + 1 < len(lst):
                g(f"v_max3_f32 v{vA}, v{vA}, v{lst[k]}, v{lst[k+1]}")
                k += 2
            else:
                g(f"v_max_f32 v{vA}, v{vA}, v{lst[k]}")
                k += 1
        for m in lst:
            g(f"v_sub_f32 v{m}, v{m}, v{vA}")
        for m in lst:
            g(f"v_exp_f32 v{m}, v{m}")
        waitfn(-1)
        if extra is not None:
            g(f"v_fma_f32 v{vB}, v{ms[0]}, v{ls[0]}, v{extra}")
        else:
            g(f"v_mul_f32 v{vB}, v{ms[0]}, v{ls[0]}")
        for i in range(1, n):
            g(f"v_fmac_f32 v{vB}, v{ms[i]}, v{ls[i]}")
        for i in range(n):
            waitfn(i)
            for r in range(4):
                qp = "[0,0,0,0]" if r < 2 else "[2,2,2,2]"
                if i == 0:
                    g(f"v_mul_f32_dpp v{ACC+r}, v{ms[i]}, v{os_[i]+r} quad_perm:{qp} {DPPALL}")
                else:
                    g(f"v_fmac_f32_dpp v{ACC+r}, v{ms[i]}, v{os_[i]+r} quad_perm:{qp} {DPPALL}")
        if extra is not None:
            g(f"v_fmac_f32_dpp v{ACC}, v{extra}, v{vVT0} quad_perm:[0,0,0,0] {DPPALL}")
            g(f"v_fmac_f32_dpp v{ACC+1}, v{extra}, v{vVT1} quad_perm:[0,0,0,0] {DPPALL}")
            g(f"v_fmac_f32_dpp v{ACC+2}, v{extra}, v{vVT0} quad_perm:[2,2,2,2] {DPPALL}")
            g(f"v_fmac_f32_dpp v{ACC+3}, v{extra}, v{vVT1} quad_perm:[2,2,2,2] {DPPALL}")

    def local_merge():
        g("s_waitcnt lgkmcnt(0)")
        g("s_barrier")
        if stamp:
            g("s_memrealtime s[64:65]")
        for i in range(NW // 4):
            g(f"ds_read_b128 {r4(MS+4*i)}, v{vE} offset:{LDS_ML+16*i}")
        for i in range(NW // 4):
            g(f"ds_read_b128 {r4(LS+4*i)}, v{vE} offset:{LDS_ML+16*NW+16*i}")
        g(f"v_lshlrev_b32 v{vC}, 4, v{vLane}")
        for w in range(NW):
            g(f"ds_read_b128 {r4(LO+4*w)}, v{vC} offset:{LDS_O+1024*w}")
        if stamp:
            g("s_waitcnt lgkmcnt(0)")
        g(f"s_waitcnt lgkmcnt({min(15, NW + NW // 4)})")
        def w1(i):
            if i == -1:
                g(f"s_waitcnt lgkmcnt({min(15, NW)})")
            else:
                g(f"s_waitcnt lgkmcnt({min(15, NW-1-i)})")
        combine([MS + i for i in range(NW)], [LS + i for i in range(NW)], [LO + 4 * i for i in range(NW)], w1)

    def put_stamps(final):
        if not stamp:
            return
        if not final:
            g("s_memrealtime s[66:67]")
            g("s_lshl_b32 s44, s2, 6")
            g("s_add_u32 s44, s44, 0x100000")
            g(f"v_mov_b32 v{ST}, s44")
            g("s_getreg_b32 s50, hwreg(HW_REG_XCC_ID)")
            g("s_getreg_b32 s51, hwreg(HW_REG_HW_ID)")
            g("s_waitcnt lgkmcnt(0)")
            for i, sr in enumerate([60, 61, 62, 63, 64, 65, 66, 67, 50, 51]):
                g(f"v_mov_b32 v{ST+2+i}, s{sr}")
            g(f"global_store_dwordx4 v{ST}, {r4(ST+2)}, s[20:21]")
            g(f"global_store_dwordx4 v{ST}, {r4(ST+6)}, s[20:21] offset:16")
            g(f"global_store_dwordx2 v{ST}, v[{ST+10}:{ST+11}], s[20:21] offset:40")
            g(f"v_mov_b32 v{ST+2}, 0")
            g(f"v_mov_b32 v{ST+3}, 0")
            g(f"global_store_dwordx2 v{ST}, v[{ST+2}:{ST+3}], s[20:21] offset:32")
            g(f"global_store_dwordx2 v{ST}, v[{ST+2}:{ST+3}], s[20:21] offset:48")
        else:
            g("s_waitcnt vmcnt(0)")
            g("s_memrealtime s[66:67]")
            g("s_waitcnt lgkmcnt(0)")
            g(f"v_mov_b32 v{ST+2}, s66")
            g(f"v_mov_b32 v{ST+3}, s67")
            g(f"global_store_dwordx2 v{ST}, v[{ST+2}:{ST+3}], s[20:21] offset:32")
            g(f"v_mov_b32 v{ST+2}, s45")
            g(f"v_mov_b32 v{ST+3}, 0")
            g(f"global_store_dwordx2 v{ST}, v[{ST+2}:{ST+3}], s[20:21] offset:48")

    def publish(sanitize):
        if sanitize:
            for r in range(4):
                g(f"v_min_u32 v{ACC+r}, -2, v{ACC+r}")
        g(f"global_store_dwordx4 v{vRec}, {r4(ACC)}, s[20:21] sc1")
        if sanitize:
            g(f"v_min_u32 v{vML}, -2, v{vA}")
            g(f"v_min_u32 v{vML+1}, -2, v{vB}")
        else:
            g(f"v_mov_b32 v{vML}, v{vA}")
            g(f"v_mov_b32 v{vML+1}, v{vB}")
        g("s_mov_b64 exec, 15")
        g(f"global_store_dwordx2 v{vRec2}, v[{vML}:{vML+1}], s[20:21] offset:1024 sc1")
        g("s_mov_b64 exec, -1")

    def output():
        g(f"v_rcp_f32 v{vB}, v{vB}")
        g("s_nop 1")
        g(f"v_mul_f32_dpp v{ACC}, v{vB}, v{ACC} quad_perm:[1,1,1,1] {DPPALL}")
        g(f"v_mul_f32_dpp v{ACC+1}, v{vB}, v{ACC+1} quad_perm:[1,1,1,1] {DPPALL}")
        g(f"v_mul_f32_dpp v{ACC+2}, v{vB}, v{ACC+2} quad_perm:[3,3,3,3] {DPPALL}")
        g(f"v_mul_f32_dpp v{ACC+3}, v{vB}, v{ACC+3} quad_perm:[3,3,3,3] {DPPALL}")
        g(f"v_cvt_pk_bf16_f32 v{D0}, v{ACC}, v{ACC+1}")
        g(f"v_cvt_pk_bf16_f32 v{D0+1}, v{ACC+2}, v{ACC+3}")
        of = (" " + a.outflags) if a.outflags else ""
        g(f"global_store_dword v{vOut}, v{D0}, s[16:17]{of}")
        g(f"global_store_dword v{vOut}, v{D0+1}, s[16:17] offset:256{of}")

    def final_merge():
        g(f"v_mov_b32 v{vML}, v{vA}")
        g(f"v_mov_b32 v{vML+1}, v{vB}")
        ms = [vML] + [RM + 2 * i for i in range(7)]
        ls = [vML + 1] + [RM + 2 * i + 1 for i in range(7)]
        os_ = [ACC] + [RO + 4 * i for i in range(7)]
        def w2(i):
            if i == -1:
                g("s_nop 0")
        combine(ms, ls, os_, w2, extra=vMt)
        output()

    def stream(sfx):
        prologue(sfx)
        g.label(f"L_loop{sfx}")
        qk(False)
        softmax(False)
        pv(False)
        g("s_sub_u32 s40, s40, 1")
        g("s_cmp_lg_u32 s40, 0")
        g(f"s_cbranch_scc1 L_loop{sfx}")
        qk(True)
        softmax(True)
        pv(True)
    g.label("L_nocw0")
    wmask = int(a.wmask, 16)
    if wmask:
        g("s_cmp_lg_u32 s49, 0")
        g("s_cbranch_scc1 L_pathB")
    stream("")
    if wmask:
        g("s_branch L_join")
        g.label("L_pathB")
        st.W = a.wb
        stream("B")
        g.label("L_join")
    finish_wave()
    g("s_cmp_lg_u32 s41, 0")
    g("s_cbranch_scc1 L_cw_last")
    g("s_waitcnt lgkmcnt(0)")
    g("s_barrier")
    g("s_endpgm")
    g.label("L_cw_last")
    g("s_mov_b32 s45, 0")
    local_merge()
    publish(False)
    g("s_waitcnt vmcnt(0)")
    ticket()
    g("s_waitcnt vmcnt(0)")
    g(f"v_readfirstlane_b32 s36, v{vTk}")
    g("s_nop 3")
    put_stamps(False)
    g("s_cmp_lg_u32 s36, 7")
    g("s_cbranch_scc1 L_end")
    polls()
    ms = [vML] + [RM + 2 * i for i in range(7)]
    ls = [vML + 1] + [RM + 2 * i + 1 for i in range(7)]
    os_ = [ACC] + [RO + 4 * i for i in range(7)]
    g("s_waitcnt vmcnt(7)")
    def w3(i):
        if i == -1:
            g("s_nop 0")
        elif i >= 1:
            g(f"s_waitcnt vmcnt({7-i})")
    combine(ms, ls, os_, w3, extra=vMt)
    output()
    put_stamps(True)
    g.label("L_end")
    g("s_endpgm")

    maxv = 512 // (NW // 4)
    assert nvgpr <= min(256, maxv), nvgpr
    lds = max(lds_total, a.lds)
    nv = a.vgpr if a.vgpr else nvgpr
    nv = max(nv, nvgpr)
    out = HEADER
    out += f"; @launch grid=(256,1,1) block=({NW*64},1,1) lds={lds}\n"
    out += f""".amdgcn_target "amdgcn-amd-amdhsa--gfx950"
.text
.globl {NAME}_kernel
.p2align 8
.type {NAME}_kernel,@function
{NAME}_kernel:
"""
    out += g.text()
    out += f""".section .rodata,"a"
.p2align 6
.amdhsa_kernel {NAME}_kernel
  .amdhsa_next_free_vgpr {nv}
  .amdhsa_next_free_sgpr 96
  .amdhsa_accum_offset {(nv + 3) // 4 * 4}
  .amdhsa_group_segment_fixed_size 0
  .amdhsa_kernarg_size 72
  .amdhsa_user_sgpr_count 2
  .amdhsa_user_sgpr_kernarg_segment_ptr 1
  .amdhsa_system_sgpr_workgroup_id_x 1
.end_amdhsa_kernel
"""
    return out


if __name__ == "__main__":
    ap = argparse.ArgumentParser()
    ap.add_argument("-o", default=None)
    ap.add_argument("--ldflags", default="nt")
    ap.add_argument("--outflags", default="")
    ap.add_argument("--nw", type=int, default=8)
    ap.add_argument("--cw", type=int, default=-1)
    ap.add_argument("--xcdmap", type=int, default=1)
    ap.add_argument("--counts", default="32,32,32,32,32,32,32,32")
    ap.add_argument("--hand", type=int, default=0)
    ap.add_argument("--win", type=int, default=8)
    ap.add_argument("--gk", type=int, default=8)
    ap.add_argument("--pat", default="lljjjwwwttsss")
    ap.add_argument("--jorder", default="01234567")
    ap.add_argument("--wb", type=int, default=6)
    ap.add_argument("--pace", type=int, default=0)
    ap.add_argument("--poff", type=int, default=150)
    ap.add_argument("--pstep", type=int, default=4)
    ap.add_argument("--pfirst", type=int, default=1)
    ap.add_argument("--ws", type=int, default=3)
    ap.add_argument("--oracle", type=int, default=0)
    ap.add_argument("--wmask", default="0")
    ap.add_argument("--wgil", type=int, default=0)
    ap.add_argument("--tkshift", type=int, default=3)
    ap.add_argument("--rotw", default="")
    ap.add_argument("--rotr", default="")
    ap.add_argument("--lds", type=int, default=90000)
    ap.add_argument("--vgpr", type=int, default=0)
    ap.add_argument("--stamp", type=int, default=0)
    a = ap.parse_args()
    s = gen(a)
    if a.o:
        open(a.o, "w").write(s)
    else:
        sys.stdout.write(s)
```

```python
import sys, argparse, struct

NAME = "standalone__tree_speculative_verify_tree_attention_over_candidate_token_tree__decode"

HEADER = """; Kernarg layout for this problem (72 bytes, ptrs only, base s[0:1]):
"""

def f32bits(x):
    return struct.unpack("<I", struct.pack("<f", x))[0]

C1 = (128 ** -0.5) * 1.4426950408889634
MASKC = -1.0e9 * 1.4426950408889634
DPPALL = "row_mask:0xf bank_mask:0xf"


class G:
    def __init__(self):
        self.l = []
    def __call__(self, s):
        self.l.append("    " + s)
    def label(self, s):
        self.l.append(s + ":")
    def text(self):
        return "\n".join(self.l) + "\n"


def r4(b):
    return f"v[{b}:{b+3}]"


def gen(a):
    NW = a.nw
    LNW = NW.bit_length() - 1
    CW = a.cw if a.cw >= 0 else NW - 1
    ldf = (" " + a.ldflags) if a.ldflags else ""
    stamp = a.stamp
    counts = [int(x) for x in a.counts.split(",")]
    assert len(counts) == 8 and sum(counts) == 256 and min(counts) >= 2 * NW
    starts = [sum(counts[:i]) for i in range(8)]
    g = G()
    vLane, vWave, vA, vB, vC = 1, 2, 3, 4, 5
    vK, vV = 6, 7
    Q = 8
    ACC = 12
    D0, D1 = 16, 20
    T0, T1 = 24, 25
    vM, vL, vPM = 26, 27, 28
    vAl = 29
    vOA = 30
    vE = 31
    AS = [32, 36]
    KR, VR = 40, 72
    vMt, vVT0, vVT1, vTkA, vTk, vRec, vRec2, vOut = 104, 105, 106, 107, 108, 109, 110, 111
    vML = 112
    RO = 116
    RM = RO + 32
    ST = RM + 16
    nvgpr = ST + (16 if stamp else 0)
    LO = KR
    MS = VR
    LS = VR + 16
    LDS_O = 0
    LDS_ML = NW * 1024
    lds_total = NW * 1024 + 2 * 4 * NW * 4
    pat = a.pat
    assert len(pat) == 13 and sorted(pat) == sorted("lljjjwwwttsss"), pat
    assert NW == 8
    pos = {c: [8 + i for i, x in enumerate(pat) if x == c] for c in "ljwts"}
    def spread(v, c):
        return sum(((v >> i) & 1) << b for i, b in enumerate(pos[c]))
    jorder = [int(x) for x in a.jorder]
    joff = [spread(j, "j") for j in jorder]
    jb = []
    b = 4096 + joff[0]
    for j in range(8):
        if not (-4096 <= joff[j] - b <= 4095):
            b = joff[j] + 4096
        jb.append(b)
    ta = spread(1, "t")
    tb = spread(2, "t") - ta
    d_even = (ta + jb[0] - jb[7]) & 0xffffffff
    d_odd = (tb + jb[0] - jb[7]) & 0xffffffff

    def pack(vals):
        lo = sum(v << (8 * i) for i, v in enumerate(vals[:4]))
        hi = sum(v << (8 * i) for i, v in enumerate(vals[4:]))
        return lo, hi

    g("s_cmp_ge_u32 s2, 256")
    g("s_cbranch_scc1 L_end")
    if stamp:
        g("s_memrealtime s[60:61]")
    if a.pace:
        g("s_memrealtime s[58:59]")
    g("s_load_dwordx16 s[4:19], s[0:1], 0")
    g("s_load_dwordx2 s[20:21], s[0:1], 64")
    g(f"v_and_b32 v{vLane}, 63, v0")
    g(f"v_lshrrev_b32 v{vWave}, 6, v0")
    if a.xcdmap == 1:
        g("s_and_b32 s23, s2, 7")
        g("s_lshl_b32 s23, s23, 2")
        g("s_bfe_u32 s3, s2, 0x20003")
        g("s_add_u32 s23, s23, s3")
        g("s_lshr_b32 s37, s2, 5")
    elif a.xcdmap == 2:
        g("s_bfe_u32 s23, s2, 0x20001")
        g("s_lshl_b32 s23, s23, 3")
        g("s_bfe_u32 s3, s2, 0x30003")
        g("s_add_u32 s23, s23, s3")
        g("s_lshr_b32 s37, s2, 6")
        g("s_lshl_b32 s37, s37, 1")
        g("s_and_b32 s3, s2, 1")
        g("s_add_u32 s37, s37, s3")
    elif a.xcdmap == 3:
        g("s_bfe_u32 s23, s2, 0x20001")
        g("s_lshl_b32 s23, s23, 3")
        g("s_bfe_u32 s3, s2, 0x30003")
        g("s_add_u32 s23, s23, s3")
        g("s_lshr_b32 s37, s2, 6")
        g("s_and_b32 s3, s2, 1")
        g("s_lshl_b32 s3, s3, 2")
        g("s_add_u32 s37, s37, s3")
    elif a.xcdmap == 4:
        g("s_bfe_u32 s23, s2, 0x20001")
        g("s_lshl_b32 s23, s23, 3")
        g("s_lshr_b32 s3, s2, 5")
        g("s_add_u32 s23, s23, s3")
        g("s_bfe_u32 s37, s2, 0x20003")
        g("s_and_b32 s3, s2, 1")
        g("s_lshl_b32 s3, s3, 2")
        g("s_add_u32 s37, s37, s3")
    elif a.xcdmap == 5:
        g("s_and_b32 s23, s2, 7")
        g("s_lshl_b32 s23, s23, 2")
        g("s_lshr_b32 s3, s2, 6")
        g("s_add_u32 s23, s23, s3")
        g("s_bfe_u32 s37, s2, 0x30003")
    else:
        g("s_lshr_b32 s23, s2, 3")
        g("s_and_b32 s37, s2, 7")
    g(f"v_readfirstlane_b32 s22, v{vWave}")
    g("s_lshl_b32 s38, s23, 3")
    g("s_add_u32 s38, s38, s37")
    g("s_lshl_b32 s3, s23, 21")
    g(f"s_add_u32 s3, s3, {jb[0]}")
    g("s_mov_b32 s40, 3")
    def sspread(src, c):
        p = pos[c]
        if p == list(range(p[0], p[0] + len(p))):
            g(f"s_lshl_b32 s43, {src}, {p[0]}")
            g("s_add_u32 s3, s3, s43")
        else:
            for i, b in enumerate(p):
                g(f"s_bfe_u32 s43, {src}, 0x{(1<<16)|i:x}")
                g(f"s_lshl_b32 s43, s43, {b}")
                g("s_add_u32 s3, s3, s43")
    if int(a.wmask, 16):
        m = int(a.wmask, 16)
        g("s_and_b32 s48, s2, 7")
        g(f"s_mov_b32 s49, 0x{m & 0xffffffff:x}")
        g("s_cmp_ge_u32 s48, 4")
        g(f"s_cselect_b32 s49, 0x{m >> 32:x}, s49")
        g("s_and_b32 s48, s48, 3")
        g("s_lshl_b32 s48, s48, 3")
        g("s_add_u32 s48, s48, s22")
        g("s_lshr_b32 s49, s49, s48")
        g("s_and_b32 s49, s49, 1")
    if not a.oracle:
        sspread("s37", "s")
        sspread("s22", "w")
    else:
        g("s_lshl_b32 s54, s2, 3")
        g("s_add_u32 s54, s54, s22")
        g("s_lshl_b32 s54, s54, 3")
        g("s_add_u32 s54, s54, 0x200000")
    if a.rot:
        src, sh = a.rot.split(":")
        src = {"wg": "s2", "wave": "s22", "slot": "s37", "pair": "s23"}[src]
        tB = spread(2, "t")
        c0 = (jb[0] - jb[7]) & 0xffffffff
        g(f"s_bfe_u32 s44, {src}, 0x{(2 << 16) | int(sh):x}")
        if a.rotmask != 3:
            g(f"s_and_b32 s44, s44, {a.rotmask}")
        sspread("s44", "t")
        g("s_and_b32 s43, s44, 1")
        g(f"s_cselect_b32 s46, 0x{(-ta) & 0xffffffff:x}, 0x{ta:x}" if False else f"s_mov_b32 s46, 0x{ta:x}")
        g(f"s_cselect_b32 s46, 0x{(-ta) & 0xffffffff:x}, s46")
        g("s_and_b32 s43, s44, 2")
        g(f"s_mov_b32 s55, 0x{tB:x}")
        g(f"s_cselect_b32 s55, 0x{(-tB) & 0xffffffff:x}, s55")
        g("s_sub_u32 s55, s55, s46")
        g(f"s_add_u32 s55, s55, 0x{c0:x}")
        g(f"s_add_u32 s46, s46, 0x{c0:x}")
        g("s_xor_b32 s55, s55, s46")
        g("s_mov_b32 s47, s46")
    else:
        g(f"s_mov_b32 s46, 0x{d_even:x}")
        g(f"s_mov_b32 s47, 0x{d_even:x}")
    lp = pos["l"]
    g(f"v_bfe_u32 v{vB}, v{vLane}, 2, 2")
    g(f"v_lshrrev_b32 v{vC}, 4, v{vLane}")
    if lp == [8, 9]:
        g(f"v_lshl_add_u32 v{vV}, v{vLane}, 4, s3")
        g(f"v_lshl_add_u32 v{vA}, v{vB}, 8, s3")
    else:
        g(f"v_and_b32 v{vV}, 15, v{vLane}")
        g(f"v_lshl_add_u32 v{vV}, v{vV}, 4, s3")
        g(f"v_bfe_u32 v{vA}, v{vLane}, 4, 1")
        g(f"v_lshl_add_u32 v{vV}, v{vA}, {lp[0]}, v{vV}")
        g(f"v_bfe_u32 v{vA}, v{vLane}, 5, 1")
        g(f"v_lshl_add_u32 v{vV}, v{vA}, {lp[1]}, v{vV}")
        g(f"v_bfe_u32 v{vA}, v{vLane}, 2, 1")
        g(f"v_lshl_add_u32 v{vK}, v{vA}, {lp[0]}, s3")
        g(f"v_bfe_u32 v{vA}, v{vLane}, 3, 1")
        g(f"v_lshl_add_u32 v{vA}, v{vA}, {lp[1]}, v{vK}")
    g(f"v_lshl_add_u32 v{vA}, v{vC}, 6, v{vA}")
    g(f"v_and_b32 v{vK}, 3, v{vLane}")
    g(f"v_lshl_add_u32 v{vK}, v{vK}, 4, v{vA}")
    g("s_lshl_b32 s24, s23, 9")
    g(f"v_lshlrev_b32 v{vC}, 6, v{vC}")
    g(f"v_lshl_add_u32 v{vC}, v{vB}, 4, v{vC}")
    g(f"v_bfe_u32 v{vA}, v{vLane}, 1, 1")
    g(f"v_lshl_add_u32 v{vA}, v{vA}, 8, v{vC}")
    g(f"v_add_u32 v{vA}, s24, v{vA}")
    g(f"s_lshl_b32 s34, s23, {a.tkshift}")
    g(f"v_mov_b32 v{vTkA}, s34")
    g(f"s_cmp_eq_u32 s22, {CW}")
    g("s_cselect_b32 s41, 1, 0")
    g("s_waitcnt lgkmcnt(0)")
    g(f"global_load_dwordx4 {r4(Q)}, v{vA}, s[4:5]")
    if a.pace:
        g(f"s_add_u32 s57, s58, {a.poff}")
        g(f"s_add_u32 s58, s57, {1 if a.pfirst else -1}")
        g("s_cmp_lg_u32 s41, 0")
    if a.oracle:
        msk = sum(1 << b for b in pos["s"] + pos["w"])
        g("s_load_dwordx2 s[52:53], s[20:21], s54")
        g("s_waitcnt lgkmcnt(0)")
        g(f"s_and_b32 s52, s52, 0x{msk:x}")
        g(f"s_and_b32 s53, s53, 0x{msk:x}")
        g(f"v_add_u32 v{vK}, s52, v{vK}")
        g(f"v_add_u32 v{vV}, s53, v{vV}")
        g(f"s_cmp_eq_u32 s22, {CW}")

    class St: pass
    st = St()
    st.W = a.win
    st.n = 0
    def issue1(idx):
        idx %= 16
        isv, j = idx >= 8, idx % 8
        ar, base, rb = (vV, "s[8:9]", VR) if isv else (vK, "s[6:7]", KR)
        g(f"global_load_dwordx4 {r4(rb+4*j)}, v{ar}, {base} offset:{joff[j]-jb[j]}{ldf}")
        if j < 7:
            if jb[j + 1] != jb[j]:
                g(f"v_add_u32 v{ar}, 0x{(jb[j+1] - jb[j]) & 0xffffffff:x}, v{ar}")
        elif d_even == d_odd and not a.rot:
            g(f"v_add_u32 v{ar}, 0x{d_even:x}, v{ar}")
        else:
            sd = "s47" if isv else "s46"
            g(f"v_add_u32 v{ar}, {sd}, v{ar}")
            g(f"s_xor_b32 {sd}, {sd}, " + ("s55" if a.rot else f"0x{d_even ^ d_odd:x}"))

    g("s_cbranch_scc0 L_nocw0")
    g("s_lshl_b32 s26, s23, 8")
    g(f"v_lshrrev_b32 v{vA}, 4, v{vLane}")
    g(f"v_lshlrev_b32 v{vB}, 6, v{vA}")
    g(f"v_and_b32 v{vC}, 3, v{vLane}")
    g(f"v_lshl_add_u32 v{vB}, v{vC}, 4, v{vB}")
    g(f"v_add_u32 v{vB}, s26, v{vB}")
    g(f"global_load_dwordx4 {r4(D1)}, v{vB}, s[10:11]")
    g(f"v_lshlrev_b32 v{vRec2}, 3, v{vC}")
    g(f"v_and_b32 v{vC}, 15, v{vLane}")
    g(f"v_lshlrev_b32 v{vC}, 4, v{vC}")
    g(f"v_lshl_add_u32 v{vOut}, v{vA}, 2, v{vC}")
    g(f"v_add_u32 v{vC}, s26, v{vOut}")
    g(f"global_load_dword v{vVT1}, v{vC}, s[12:13]")
    g("s_load_dword s27, s[14:15], 0")
    g(f"v_add_u32 v{vOut}, s24, v{vOut}")
    g("s_lshl_b32 s32, s38, 11")
    g(f"v_lshlrev_b32 v{vRec}, 4, v{vLane}")
    g(f"v_add_u32 v{vRec}, s32, v{vRec}")
    g(f"v_add_u32 v{vRec2}, s32, v{vRec2}")
    g(f"v_mov_b32 v{vTk}, 1")
    if a.pretouch & 1:
        g(f"global_load_dword v{RO}, v{vRec2}, s[20:21] sc1")
        g(f"global_load_dword v{RO+1}, v{vTkA}, s[18:19] sc1")
        g(f"global_load_dword v{RO+2}, v{vOut}, s[16:17] sc1")
    if a.hand == 1:
        for r in range(4):
            g(f"v_mov_b32 v{RO+r}, -1")
        g(f"global_store_dwordx4 v{vRec}, {r4(RO)}, s[20:21] sc1")
        g("s_mov_b64 exec, 15")
        g(f"global_store_dwordx2 v{vRec2}, v[{RO}:{RO+1}], s[20:21] offset:1024 sc1")
        g("s_mov_b64 exec, -1")
    def prologue(sfx):
        if a.pretouch & 2:
            g("s_mov_b64 exec, 1")
            g(f"global_load_dword v{RO+3}, v{vV}, s[8:9] offset:{joff[0]-jb[0]}{ldf}")
            g("s_mov_b64 exec, -1")
        for i in range(st.W):
            issue1(i)
        g(f"s_mov_b32 s25, 0x{f32bits(C1):08x}")
        g(f"v_and_b32 v{vA}, 1, v{vLane}")
        g(f"v_lshlrev_b32 v{vA}, 4, v{vA}")
        g(f"v_mov_b32 v{vB}, 0xffff")
        g(f"v_lshlrev_b32 v{vPM}, v{vA}, v{vB}")
        for s in AS:
            for r in range(4):
                g(f"v_mov_b32 v{s+r}, 0")
        for r in range(4):
            g(f"v_mov_b32 v{ACC+r}, 0")
        g(f"v_lshlrev_b32 v{vOA}, 4, v0")
        g(f"v_mov_b32 v{vL}, 0")
        g(f"v_mov_b32 v{vM}, 0xff7fffff")
        g(f"v_and_b32 v{vE}, 3, v{vLane}")
        g(f"v_mul_u32_u24 v{vE}, {4*NW}, v{vE}")
        g("s_cmp_lg_u32 s41, 0")
        g(f"s_cbranch_scc0 L_loop{sfx}")
        g(f"s_waitcnt vmcnt({st.W}) lgkmcnt(0)")
        g(f"v_mfma_f32_16x16x32_bf16 {r4(D0)}, {r4(D1)}, {r4(Q)}, 0")
        g(f"v_lshlrev_b32 v{vVT0}, 16, v{vVT1}")
        g(f"v_and_b32 v{vVT1}, 0xffff0000, v{vVT1}")
        g("s_lshr_b32 s33, s23, 4")
        g("s_lshl_b32 s33, s33, 4")
        g("s_lshr_b32 s27, s27, s33")
        g("s_lshl_b32 s27, s27, 16")
        g("s_nop 3")
        g(f"v_add_f32_dpp v{vA}, v{D0+1}, v{D0} row_ror:12 {DPPALL}")
        g(f"v_add_f32_dpp v{vB}, v{D0+3}, v{D0+2} row_ror:12 {DPPALL}")
        g("s_nop 1")
        g(f"v_add_f32_dpp v{vA}, v{vB}, v{vA} row_ror:8 {DPPALL}")
        g("s_nop 1")
        g(f"v_mov_b32_dpp v{vMt}, v{vA} quad_perm:[0,1,2,3] row_mask:0xf bank_mask:0x1")
        g("s_nop 1")
        g(f"v_mov_b32_dpp v{vMt}, v{vA} row_ror:4 row_mask:0xf bank_mask:0x2")
        g("s_nop 1")
        g(f"v_mov_b32_dpp v{vMt}, v{vA} row_ror:8 row_mask:0xf bank_mask:0x4")
        g("s_nop 1")
        g(f"v_mov_b32_dpp v{vMt}, v{vA} row_ror:12 row_mask:0xf bank_mask:0x8")
        g(f"v_sub_f32 v{vB}, 1.0, s27")
        g(f"v_mul_f32 v{vB}, 0x{f32bits(MASKC):08x}, v{vB}")
        g(f"v_fma_f32 v{vMt}, v{vMt}, s25, v{vB}")
        if stamp:
            g(f"s_waitcnt vmcnt({st.W-1})")
            g("s_memrealtime s[62:63]")


    def xreduce(op, x, y):
        g("s_nop 1")
        g(f"{op}_dpp v{y}, v{x}, v{x} row_ror:4 {DPPALL}")
        g("s_nop 1")
        g(f"{op}_dpp v{x}, v{y}, v{y} row_ror:8 {DPPALL}")
        g(f"v_mov_b32 v{y}, v{x}")
        g("s_nop 1")
        g(f"v_permlane16_swap_b32 v{x}, v{y}")
        g(f"{op} v{x}, v{x}, v{y}")
        g(f"v_mov_b32 v{y}, v{x}")
        g("s_nop 1")
        g(f"v_permlane32_swap_b32 v{x}, v{y}")
        g(f"{op} v{x}, v{x}, v{y}")

    def ror(n):
        n %= 16
        return "quad_perm:[0,1,2,3]" if n == 0 else f"row_ror:{n}"

    def wcount(i, last):
        W = st.W
        return min(W - 1, 15 - i) if last else W - 1

    def refill(i, last):
        W = st.W
        if last and i + W >= 16:
            return 0
        if a.pace:
            if i % a.pstep == 0:
                g("s_waitcnt lgkmcnt(0)")
                g("s_sub_u32 s56, s58, s57")
                g("s_cmp_lt_i32 s56, 0")
                g("s_cselect_b64 vcc, -1, 0")
                g(f"s_add_u32 s57, s57, {a.pace}")
            st.n += 1
            g(f"s_cbranch_vccz L_sk{st.n}")
            g(f"s_waitcnt vmcnt({a.ws-1})")
            g.label(f"L_sk{st.n}")
        issue1(i + W)
        if a.pace and i % a.pstep == a.pstep - 1:
            g("s_memrealtime s[58:59]")
        return 1

    def qk(last):
        for j in range(8):
            D = D0 if j % 2 == 0 else D1
            g(f"s_waitcnt vmcnt({wcount(j, last)})")
            g(f"v_mfma_f32_16x16x32_bf16 {r4(D)}, {r4(KR+4*j)}, {r4(Q)}, 0")
            n = refill(j, last)
            if j >= 1:
                jp = j - 1
                Dp = D0 if jp % 2 == 0 else D1
                q = jp & 3
                T = T0 if jp < 4 else T1
                x, y, z, w_ = [Dp + ((q + i) % 4) for i in range(4)]
                g(f"s_nop {6-n}")
                g(f"v_add_f32_dpp v{vA}, v{y}, v{x} row_ror:12 {DPPALL}")
                g(f"v_add_f32_dpp v{vB}, v{w_}, v{z} row_ror:12 {DPPALL}")
                g("s_nop 1")
                g(f"v_add_f32_dpp v{T}, v{vB}, v{vA} row_ror:8 row_mask:0xf bank_mask:0x{1<<q:x}")
        Dp = D1
        q = 3
        x, y, z, w_ = [Dp + ((q + i) % 4) for i in range(4)]
        g(f"v_add_f32_dpp v{vA}, v{y}, v{x} row_ror:12 {DPPALL}")
        g(f"v_add_f32_dpp v{vB}, v{w_}, v{z} row_ror:12 {DPPALL}")
        g("s_nop 1")
        g(f"v_add_f32_dpp v{T1}, v{vB}, v{vA} row_ror:8 row_mask:0xf bank_mask:0x{1<<q:x}")

    def softmax(last):
        g(f"v_max_f32 v{vA}, v{T0}, v{T1}")
        xreduce("v_max_f32", vA, vB)
        g(f"v_mul_f32 v{vA}, s25, v{vA}")
        g(f"v_max_f32 v{vA}, v{vA}, v{vM}")
        g(f"v_sub_f32 v{vAl}, v{vM}, v{vA}")
        g(f"v_mov_b32 v{vM}, v{vA}")
        g(f"v_exp_f32 v{vAl}, v{vAl}")
        g(f"v_fma_f32 v{T0}, v{T0}, s25, -v{vM}")
        g(f"v_fma_f32 v{T1}, v{T1}, s25, -v{vM}")
        g(f"v_exp_f32 v{T0}, v{T0}")
        g(f"v_exp_f32 v{T1}, v{T1}")
        g(f"v_mul_f32 v{vL}, v{vL}, v{vAl}")
        for r in range(4):
            qp = "[0,0,0,0]" if r < 2 else "[2,2,2,2]"
            g(f"v_mul_f32_dpp v{ACC+r}, v{vAl}, v{ACC+r} quad_perm:{qp} {DPPALL}")
        g(f"v_cvt_pk_bf16_f32 v{T0}, v{T0}, v{T0}")
        g(f"v_cvt_pk_bf16_f32 v{T1}, v{T1}, v{T1}")
        g(f"v_and_b32 v{T0}, v{T0}, v{vPM}")
        g(f"v_and_b32 v{T1}, v{T1}, v{vPM}")
        g(f"v_add_f32 v{vL}, v{vL}, v{T0}")
        g(f"v_add_f32 v{vL}, v{vL}, v{T1}")
        if last:
            xreduce("v_add_f32", vL, vB)
            g(f"v_lshl_add_u32 v{vB}, v{vWave}, 2, v{vE}")
            g(f"ds_write_b32 v{vB}, v{vM} offset:{LDS_ML}")
            g(f"ds_write_b32 v{vB}, v{vL} offset:{LDS_ML+16*NW}")

    def pv(last):
        for j in range(8):
            A = AS[j % 2]
            T = T0 if j < 4 else T1
            q = j & 3
            for r in range(4):
                g(f"v_mov_b32_dpp v{A+r}, v{T} {ror(4*(r-q))} row_mask:0xf bank_mask:0x{1<<r:x}")
            g(f"s_waitcnt vmcnt({wcount(8+j, last)})")
            g("s_nop 0")
            g(f"v_mfma_f32_16x16x32_bf16 {r4(ACC)}, {r4(A)}, {r4(VR+4*j)}, {r4(ACC)}")
            refill(8 + j, last)

    def ticket():
        g("s_mov_b64 exec, 1")
        g(f"global_atomic_add v{vTk}, v{vTkA}, v{vTk}, s[18:19] sc0")
        g("s_mov_b64 exec, -1")

    def finish_wave():
        g("s_nop 7")
        g(f"ds_write_b128 v{vOA}, {r4(ACC)} offset:{LDS_O}")

    def polls():
        for i in range(1, 8):
            g(f"v_xor_b32 v{vA}, {i*2048}, v{vRec2}")
            g(f"global_load_dwordx2 v[{RM+2*(i-1)}:{RM+2*(i-1)+1}], v{vA}, s[20:21] offset:1024 sc1")
        for i in range(1, 8):
            g(f"v_xor_b32 v{vA}, {i*2048}, v{vRec}")
            g(f"global_load_dwordx4 {r4(RO+4*(i-1))}, v{vA}, s[20:21] sc1")

    def combine(ms, ls, os_, waitfn, extra=None, own=False):
        n = len(ms)
        lst = list(ms) + ([extra] if extra is not None else [])
        g(f"v_max3_f32 v{vA}, v{lst[0]}, v{lst[1]}, v{lst[2]}")
        k = 3
        while k < len(lst):
            if k + 1 < len(lst):
                g(f"v_max3_f32 v{vA}, v{vA}, v{lst[k]}, v{lst[k+1]}")
                k += 2
            else:
                g(f"v_max_f32 v{vA}, v{vA}, v{lst[k]}")
                k += 1
        for m in lst:
            g(f"v_sub_f32 v{m}, v{m}, v{vA}")
        for m in lst:
            g(f"v_exp_f32 v{m}, v{m}")
        waitfn(-1)
        if extra is not None:
            g(f"v_fma_f32 v{vB}, v{ms[0]}, v{ls[0]}, v{extra}")
        else:
            g(f"v_mul_f32 v{vB}, v{ms[0]}, v{ls[0]}")
        for i in range(1, n):
            g(f"v_fmac_f32 v{vB}, v{ms[i]}, v{ls[i]}")
        for i in range(n):
            waitfn(i)
            for r in range(4):
                qp = "[0,0,0,0]" if r < 2 else "[2,2,2,2]"
                if i == 0:
                    g(f"v_mul_f32_dpp v{ACC+r}, v{ms[i]}, v{os_[i]+r} quad_perm:{qp} {DPPALL}")
                else:
                    g(f"v_fmac_f32_dpp v{ACC+r}, v{ms[i]}, v{os_[i]+r} quad_perm:{qp} {DPPALL}")
        if extra is not None:
            g(f"v_fmac_f32_dpp v{ACC}, v{extra}, v{vVT0} quad_perm:[0,0,0,0] {DPPALL}")
            g(f"v_fmac_f32_dpp v{ACC+1}, v{extra}, v{vVT1} quad_perm:[0,0,0,0] {DPPALL}")
            g(f"v_fmac_f32_dpp v{ACC+2}, v{extra}, v{vVT0} quad_perm:[2,2,2,2] {DPPALL}")
            g(f"v_fmac_f32_dpp v{ACC+3}, v{extra}, v{vVT1} quad_perm:[2,2,2,2] {DPPALL}")

    def local_merge():
        g("s_waitcnt lgkmcnt(0)")
        g("s_barrier")
        if stamp:
            g("s_memrealtime s[64:65]")
        for i in range(NW // 4):
            g(f"ds_read_b128 {r4(MS+4*i)}, v{vE} offset:{LDS_ML+16*i}")
        for i in range(NW // 4):
            g(f"ds_read_b128 {r4(LS+4*i)}, v{vE} offset:{LDS_ML+16*NW+16*i}")
        g(f"v_lshlrev_b32 v{vC}, 4, v{vLane}")
        for w in range(NW):
            g(f"ds_read_b128 {r4(LO+4*w)}, v{vC} offset:{LDS_O+1024*w}")
        if stamp:
            g("s_waitcnt lgkmcnt(0)")
        g(f"s_waitcnt lgkmcnt({min(15, NW + NW // 4)})")
        def w1(i):
            if i == -1:
                g(f"s_waitcnt lgkmcnt({min(15, NW)})")
            else:
                g(f"s_waitcnt lgkmcnt({min(15, NW-1-i)})")
        combine([MS + i for i in range(NW)], [LS + i for i in range(NW)], [LO + 4 * i for i in range(NW)], w1)

    def put_stamps(final):
        if not stamp:
            return
        if not final:
            g("s_memrealtime s[66:67]")
            g("s_lshl_b32 s44, s2, 6")
            g("s_add_u32 s44, s44, 0x100000")
            g(f"v_mov_b32 v{ST}, s44")
            g("s_getreg_b32 s50, hwreg(HW_REG_XCC_ID)")
            g("s_getreg_b32 s51, hwreg(HW_REG_HW_ID)")
            g("s_waitcnt lgkmcnt(0)")
            for i, sr in enumerate([60, 61, 62, 63, 64, 65, 66, 67, 50, 51]):
                g(f"v_mov_b32 v{ST+2+i}, s{sr}")
            g(f"global_store_dwordx4 v{ST}, {r4(ST+2)}, s[20:21]")
            g(f"global_store_dwordx4 v{ST}, {r4(ST+6)}, s[20:21] offset:16")
            g(f"global_store_dwordx2 v{ST}, v[{ST+10}:{ST+11}], s[20:21] offset:40")
            g(f"v_mov_b32 v{ST+2}, 0")
            g(f"v_mov_b32 v{ST+3}, 0")
            g(f"global_store_dwordx2 v{ST}, v[{ST+2}:{ST+3}], s[20:21] offset:32")
            g(f"global_store_dwordx2 v{ST}, v[{ST+2}:{ST+3}], s[20:21] offset:48")
        else:
            g("s_waitcnt vmcnt(0)")
            g("s_memrealtime s[66:67]")
            g("s_waitcnt lgkmcnt(0)")
            g(f"v_mov_b32 v{ST+2}, s66")
            g(f"v_mov_b32 v{ST+3}, s67")
            g(f"global_store_dwordx2 v{ST}, v[{ST+2}:{ST+3}], s[20:21] offset:32")
            g(f"v_mov_b32 v{ST+2}, s45")
            g(f"v_mov_b32 v{ST+3}, 0")
            g(f"global_store_dwordx2 v{ST}, v[{ST+2}:{ST+3}], s[20:21] offset:48")

    def publish(sanitize):
        if sanitize:
            for r in range(4):
                g(f"v_min_u32 v{ACC+r}, -2, v{ACC+r}")
        g(f"global_store_dwordx4 v{vRec}, {r4(ACC)}, s[20:21] sc1")
        if sanitize:
            g(f"v_min_u32 v{vML}, -2, v{vA}")
            g(f"v_min_u32 v{vML+1}, -2, v{vB}")
        else:
            g(f"v_mov_b32 v{vML}, v{vA}")
            g(f"v_mov_b32 v{vML+1}, v{vB}")
        g("s_mov_b64 exec, 15")
        g(f"global_store_dwordx2 v{vRec2}, v[{vML}:{vML+1}], s[20:21] offset:1024 sc1")
        g("s_mov_b64 exec, -1")

    def output():
        g(f"v_rcp_f32 v{vB}, v{vB}")
        g("s_nop 1")
        g(f"v_mul_f32_dpp v{ACC}, v{vB}, v{ACC} quad_perm:[1,1,1,1] {DPPALL}")
        g(f"v_mul_f32_dpp v{ACC+1}, v{vB}, v{ACC+1} quad_perm:[1,1,1,1] {DPPALL}")
        g(f"v_mul_f32_dpp v{ACC+2}, v{vB}, v{ACC+2} quad_perm:[3,3,3,3] {DPPALL}")
        g(f"v_mul_f32_dpp v{ACC+3}, v{vB}, v{ACC+3} quad_perm:[3,3,3,3] {DPPALL}")
        g(f"v_cvt_pk_bf16_f32 v{D0}, v{ACC}, v{ACC+1}")
        g(f"v_cvt_pk_bf16_f32 v{D0+1}, v{ACC+2}, v{ACC+3}")
        of = (" " + a.outflags) if a.outflags else ""
        g(f"global_store_dword v{vOut}, v{D0}, s[16:17]{of}")
        g(f"global_store_dword v{vOut}, v{D0+1}, s[16:17] offset:256{of}")

    def final_merge():
        g(f"v_mov_b32 v{vML}, v{vA}")
        g(f"v_mov_b32 v{vML+1}, v{vB}")
        ms = [vML] + [RM + 2 * i for i in range(7)]
        ls = [vML + 1] + [RM + 2 * i + 1 for i in range(7)]
        os_ = [ACC] + [RO + 4 * i for i in range(7)]
        def w2(i):
            if i == -1:
                g("s_nop 0")
        combine(ms, ls, os_, w2, extra=vMt)
        output()

    def stream(sfx):
        prologue(sfx)
        g.label(f"L_loop{sfx}")
        qk(False)
        softmax(False)
        pv(False)
        g("s_sub_u32 s40, s40, 1")
        g("s_cmp_lg_u32 s40, 0")
        g(f"s_cbranch_scc1 L_loop{sfx}")
        qk(True)
        softmax(True)
        pv(True)
    g.label("L_nocw0")
    wmask = int(a.wmask, 16)
    if wmask:
        g("s_cmp_lg_u32 s49, 0")
        g("s_cbranch_scc1 L_pathB")
    stream("")
    if wmask:
        g("s_branch L_join")
        g.label("L_pathB")
        st.W = a.wb
        stream("B")
        g.label("L_join")
    finish_wave()
    g("s_cmp_lg_u32 s41, 0")
    g("s_cbranch_scc1 L_cw_last")
    g("s_waitcnt lgkmcnt(0)")
    g("s_barrier")
    g("s_endpgm")
    g.label("L_cw_last")
    g("s_mov_b32 s45, 0")
    local_merge()
    publish(False)
    g("s_waitcnt vmcnt(0)")
    ticket()
    g("s_waitcnt vmcnt(0)")
    g(f"v_readfirstlane_b32 s36, v{vTk}")
    g("s_nop 3")
    put_stamps(False)
    g("s_cmp_lg_u32 s36, 7")
    g("s_cbranch_scc1 L_end")
    polls()
    ms = [vML] + [RM + 2 * i for i in range(7)]
    ls = [vML + 1] + [RM + 2 * i + 1 for i in range(7)]
    os_ = [ACC] + [RO + 4 * i for i in range(7)]
    g("s_waitcnt vmcnt(7)")
    def w3(i):
        if i == -1:
            g("s_nop 0")
        elif i >= 1:
            g(f"s_waitcnt vmcnt({7-i})")
    combine(ms, ls, os_, w3, extra=vMt)
    output()
    put_stamps(True)
    g.label("L_end")
    g("s_endpgm")

    maxv = 512 // (NW // 4)
    assert nvgpr <= min(256, maxv), nvgpr
    lds = max(lds_total, a.lds)
    nv = a.vgpr if a.vgpr else nvgpr
    nv = max(nv, nvgpr)
    out = HEADER
    out += f"; @launch grid=(256,1,1) block=({NW*64},1,1) lds={lds}\n"
    out += f""".amdgcn_target "amdgcn-amd-amdhsa--gfx950"
.text
.globl {NAME}_kernel
.p2align 8
.type {NAME}_kernel,@function
{NAME}_kernel:
"""
    out += g.text()
    out += f""".section .rodata,"a"
.p2align 6
.amdhsa_kernel {NAME}_kernel
  .amdhsa_next_free_vgpr {nv}
  .amdhsa_next_free_sgpr 96
  .amdhsa_accum_offset {(nv + 3) // 4 * 4}
  .amdhsa_group_segment_fixed_size 0
  .amdhsa_kernarg_size 72
  .amdhsa_user_sgpr_count 2
  .amdhsa_user_sgpr_kernarg_segment_ptr 1
  .amdhsa_system_sgpr_workgroup_id_x 1
.end_amdhsa_kernel
"""
    return out


if __name__ == "__main__":
    ap = argparse.ArgumentParser()
    ap.add_argument("-o", default=None)
    ap.add_argument("--ldflags", default="nt")
    ap.add_argument("--outflags", default="")
    ap.add_argument("--nw", type=int, default=8)
    ap.add_argument("--cw", type=int, default=-1)
    ap.add_argument("--xcdmap", type=int, default=1)
    ap.add_argument("--counts", default="32,32,32,32,32,32,32,32")
    ap.add_argument("--hand", type=int, default=0)
    ap.add_argument("--win", type=int, default=8)
    ap.add_argument("--gk", type=int, default=8)
    ap.add_argument("--pat", default="lljjjwwwttsss")
    ap.add_argument("--jorder", default="01234567")
    ap.add_argument("--wb", type=int, default=6)
    ap.add_argument("--pretouch", type=int, default=0)
    ap.add_argument("--rot", default="")
    ap.add_argument("--rotmask", type=int, default=3)
    ap.add_argument("--pace", type=int, default=0)
    ap.add_argument("--poff", type=int, default=150)
    ap.add_argument("--pstep", type=int, default=4)
    ap.add_argument("--pfirst", type=int, default=1)
    ap.add_argument("--ws", type=int, default=3)
    ap.add_argument("--oracle", type=int, default=0)
    ap.add_argument("--wmask", default="0")
    ap.add_argument("--wgil", type=int, default=0)
    ap.add_argument("--tkshift", type=int, default=3)
    ap.add_argument("--rotw", default="")
    ap.add_argument("--rotr", default="")
    ap.add_argument("--lds", type=int, default=90000)
    ap.add_argument("--vgpr", type=int, default=0)
    ap.add_argument("--stamp", type=int, default=0)
    a = ap.parse_args()
    s = gen(a)
    if a.o:
        open(a.o, "w").write(s)
    else:
        sys.stdout.write(s)
```

```python
import sys, argparse, struct

NAME = "standalone__tree_speculative_verify_tree_attention_over_candidate_token_tree__decode"

HEADER = """; Kernarg layout for this problem (72 bytes, ptrs only, base s[0:1]):
"""

def f32bits(x):
    return struct.unpack("<I", struct.pack("<f", x))[0]

C1 = (128 ** -0.5) * 1.4426950408889634
MASKC = -1.0e9 * 1.4426950408889634
DPPALL = "row_mask:0xf bank_mask:0xf"
M32 = 0xffffffff


class G:
    def __init__(self):
        self.l = []
    def __call__(self, s):
        self.l.append("    " + s)
    def label(self, s):
        self.l.append(s + ":")
    def c(self, s):
        self.l.append("    ; " + s)
    def text(self):
        return "\n".join(self.l) + "\n"


def r4(b):
    return f"v[{b}:{b+3}]"
def r2(b):
    return f"v[{b}:{b+1}]"


def gen(a):
    NW = 8
    W = a.win
    ldf = (" " + a.ldflags) if a.ldflags else ""
    stamp = a.stamp
    g = G()
    vLane, vWave, vA, vB, vC = 1, 2, 3, 4, 5
    vK, vV = 6, 7
    Q = 8
    ACC = 12
    D0, D1 = 16, 20
    T = 72
    vM, vL, vPM = 26, 27, 28
    vAl, vOA, vE = 29, 30, 31
    AS = [32, 36]
    KR, VR = 40, 72
    vZ, vT = 104, 105
    ST = 106
    nvgpr = ST + (14 if stamp else 0)
    vMt, vVT, vRec, vMLA, vOut, vTkA = 6, 24, 7, 28, 29, 30
    vX = 32
    vY = 36
    LO = KR
    RO = VR
    vRA = [100, 101, 102, 103, 104, 105, 31]
    LDS_O, LDS_ML, LDS_T0 = 0, 8192, 8192 + 256
    SG, SF, STR = 64, 80, 96
    SM = 40

    pat = a.pat
    assert len(pat) == 13 and sorted(pat) == sorted("lljjjwwwttsss"), pat
    pos = {c: [8 + i for i, x in enumerate(pat) if x == c] for c in "ljwts"}
    def spread(v, c):
        return sum(((v >> i) & 1) << b for i, b in enumerate(pos[c]))
    joff = [spread(j, "j") for j in range(8)]
    jb = []
    b = 4096 + joff[0]
    for j in range(8):
        if not (-4096 <= joff[j] - b <= 4095):
            b = joff[j] + 4096
        jb.append(b)
    ta = spread(1, "t")
    tB = spread(2, "t")
    c0 = (jb[0] - jb[7]) & M32
    d_even = (ta + c0) & M32
    d_odd = (tB - ta + c0) & M32

    g("s_cmp_ge_u32 s2, 256")
    g("s_cbranch_scc1 L_end")
    if a.only != 255:
        g("s_and_b32 s3, s2, 7")
        g(f"s_lshr_b32 s3, {a.only}, s3")
        g("s_and_b32 s3, s3, 1")
        g("s_cbranch_scc0 L_end")
    g("s_memrealtime s[58:59]")
    g("s_load_dwordx16 s[4:19], s[0:1], 0")
    g("s_load_dwordx2 s[20:21], s[0:1], 64")
    g(f"v_and_b32 v{vLane}, 63, v0")
    g(f"v_lshrrev_b32 v{vWave}, 6, v0")
    g.c("s23 = (batch, kv head) pair, s37 = key slot")
    if a.xcdmap == 1:
        g("s_and_b32 s23, s2, 7")
        g("s_lshl_b32 s23, s23, 2")
        g("s_bfe_u32 s3, s2, 0x20003")
        g("s_add_u32 s23, s23, s3")
        g("s_lshr_b32 s37, s2, 5")
    else:
        g("s_lshr_b32 s23, s2, 3")
        g("s_and_b32 s37, s2, 7")
    g(f"v_readfirstlane_b32 s22, v{vWave}")
    g.c("Q offset: pair*512 + ((l>>1)&1)*256 + (l>>4)*64 + ((l>>2)&3)*16")
    g(f"v_bfe_u32 v{vB}, v{vLane}, 2, 2")
    g(f"v_lshrrev_b32 v{vC}, 4, v{vLane}")
    g("s_lshl_b32 s24, s23, 9")
    g(f"v_lshlrev_b32 v{vE}, 6, v{vC}")
    g(f"v_lshl_add_u32 v{vE}, v{vB}, 4, v{vE}")
    g(f"v_bfe_u32 v{vA}, v{vLane}, 1, 1")
    g(f"v_lshl_add_u32 v{vE}, v{vA}, 8, v{vE}")
    g(f"v_add_u32 v{vE}, s24, v{vE}")
    g(f"s_mov_b32 s25, 0x{f32bits(C1):08x}")
    g("s_cmp_eq_u32 s22, 8")
    g("s_cbranch_scc1 L_helper")

    g("s_lshl_b32 s3, s23, 21")
    g(f"s_add_u32 s3, s3, {jb[0]}")
    g("s_mov_b32 s40, 3")
    def sspread(src, c):
        p = pos[c]
        if p == list(range(p[0], p[0] + len(p))):
            g(f"s_lshl_b32 s43, {src}, {p[0]}")
            g("s_add_u32 s3, s3, s43")
        else:
            for i, b in enumerate(p):
                g(f"s_bfe_u32 s43, {src}, 0x{(1<<16)|i:x}")
                g(f"s_lshl_b32 s43, s43, {b}")
                g("s_add_u32 s3, s3, s43")
    sspread("s37", "s")
    sspread("s22", "w")
    if a.rot:
        src, sh = a.rot.split(":")
        src = {"wg": "s2", "wave": "s22", "slot": "s37", "pair": "s23"}[src]
        g(f"s_bfe_u32 s44, {src}, 0x{(2 << 16) | int(sh):x}")
        sspread("s44", "t")
    lp = pos["l"]
    if lp == [8, 9]:
        g(f"v_lshl_add_u32 v{vV}, v{vLane}, 4, s3")
        g(f"v_lshl_add_u32 v{vA}, v{vB}, 8, s3")
    else:
        g(f"v_and_b32 v{vV}, 15, v{vLane}")
        g(f"v_lshl_add_u32 v{vV}, v{vV}, 4, s3")
        g(f"v_bfe_u32 v{vA}, v{vLane}, 4, 1")
        g(f"v_lshl_add_u32 v{vV}, v{vA}, {lp[0]}, v{vV}")
        g(f"v_bfe_u32 v{vA}, v{vLane}, 5, 1")
        g(f"v_lshl_add_u32 v{vV}, v{vA}, {lp[1]}, v{vV}")
        g(f"v_bfe_u32 v{vA}, v{vLane}, 2, 1")
        g(f"v_lshl_add_u32 v{vK}, v{vA}, {lp[0]}, s3")
        g(f"v_bfe_u32 v{vA}, v{vLane}, 3, 1")
        g(f"v_lshl_add_u32 v{vA}, v{vA}, {lp[1]}, v{vK}")
    g(f"v_lshl_add_u32 v{vA}, v{vC}, 6, v{vA}")
    g(f"v_and_b32 v{vK}, 3, v{vLane}")
    g(f"v_lshl_add_u32 v{vK}, v{vK}, 4, v{vA}")
    if a.rot:
        g("s_and_b32 s43, s44, 1")
        g(f"s_mov_b32 s46, 0x{ta:x}")
        g(f"s_cselect_b32 s46, 0x{(-ta) & M32:x}, s46")
        g("s_and_b32 s43, s44, 2")
        g(f"s_mov_b32 s55, 0x{tB:x}")
        g(f"s_cselect_b32 s55, 0x{(-tB) & M32:x}, s55")
        g("s_sub_u32 s55, s55, s46")
        if c0:
            g(f"s_add_u32 s55, s55, 0x{c0:x}")
            g(f"s_add_u32 s46, s46, 0x{c0:x}")
        g("s_xor_b32 s55, s55, s46")
        g("s_mov_b32 s47, s46")
    elif d_even != d_odd:
        g(f"s_mov_b32 s46, 0x{d_even:x}")
        g(f"s_mov_b32 s47, 0x{d_even:x}")
    g("s_waitcnt lgkmcnt(0)")

    def issue1(isv, j):
        ar, base = (vV, "s[8:9]") if isv else (vK, "s[6:7]")
        g(f"global_load_dwordx4 {r4(KR+4*j)}, v{ar}, {base} offset:{joff[j]-jb[j]}{ldf}")
        if j < 7:
            if jb[j + 1] != jb[j]:
                g(f"v_add_u32 v{ar}, 0x{(jb[j+1] - jb[j]) & M32:x}, v{ar}")
        elif d_even == d_odd and not a.rot:
            g(f"v_add_u32 v{ar}, 0x{d_even:x}, v{ar}")
        else:
            sd = "s47" if isv else "s46"
            g(f"v_add_u32 v{ar}, {sd}, v{ar}")
            g(f"s_xor_b32 {sd}, {sd}, " + ("s55" if a.rot else f"0x{d_even ^ d_odd:x}"))

    assert W <= 8
    if a.qfirst:
        g(f"global_load_dwordx4 {r4(Q)}, v{vE}, s[4:5]")
        for i in range(W):
            issue1(0, i)
    else:
        issue1(0, 0)
        g(f"global_load_dwordx4 {r4(Q)}, v{vE}, s[4:5]")
        for i in range(1, W):
            issue1(0, i)
    g("s_mov_b32 s54, s58")
    g("s_mov_b32 s53, s58")
    g(f"s_mov_b32 s57, {a.poff}")
    g(f"s_add_u32 s58, s58, {a.poff + a.first}")
    g(f"v_and_b32 v{vA}, 1, v{vLane}")
    g(f"v_lshlrev_b32 v{vA}, 4, v{vA}")
    g(f"v_mov_b32 v{vB}, 0xffff")
    g(f"v_lshlrev_b32 v{vPM}, v{vA}, v{vB}")
    for s in AS:
        for r in range(4):
            g(f"v_mov_b32 v{s+r}, 0")
    for r in range(4):
        g(f"v_mov_b32 v{ACC+r}, 0")
    g(f"v_lshlrev_b32 v{vOA}, 4, v0")
    g(f"v_and_b32 v{vE}, 3, v{vLane}")
    g(f"v_lshlrev_b32 v{vE}, 3, v{vE}")
    g(f"v_lshl_add_u32 v{vE}, v{vWave}, 5, v{vE}")
    g(f"v_mov_b32 v{vZ}, 0")
    if a.trace:
        g(f"v_mov_b32 v{ST}, s54")
        g("s_mov_b32 m0, 1")

    def xreduce(op, x, y, swap32=True):
        g("s_nop 1")
        g(f"{op}_dpp v{y}, v{x}, v{x} row_ror:4 {DPPALL}")
        g("s_nop 1")
        g(f"{op}_dpp v{x}, v{y}, v{y} row_ror:8 {DPPALL}")
        g(f"v_mov_b32 v{y}, v{x}")
        g("s_nop 1")
        g(f"v_permlane16_swap_b32 v{x}, v{y}")
        g(f"{op} v{x}, v{x}, v{y}")
        if swap32:
            g(f"v_mov_b32 v{y}, v{x}")
            g("s_nop 1")
            g(f"v_permlane32_swap_b32 v{x}, v{y}")
            g(f"{op} v{x}, v{x}, v{y}")

    def ror(n):
        n %= 16
        return "quad_perm:[0,1,2,3]" if n == 0 else f"row_ror:{n}"

    cnt = [0]
    def refill(isv, i, last):
        if isv and last and i + W >= 8:
            return 0
        ps = a.pstep
        if a.pace:
            if i % ps == 0:
                g("s_waitcnt lgkmcnt(0)")
                if a.trace:
                    g(f"v_writelane_b32 v{ST}, s58, m0")
                    g("s_add_u32 m0, m0, 1")
                if a.sync and i in a.syncat and not last and not isv:
                    g(f"v_readfirstlane_b32 s52, v{vT}")
                    g("s_sub_u32 s56, s54, s52")
                    g(f"s_cmp_lt_u32 s56, {a.syncmax}")
                    g("s_cselect_b32 s53, s52, s53")
                g("s_sub_u32 s56, s58, s53")
                g("s_sub_u32 s56, s56, s57")
                g(f"s_cmp_lt_i32 s56, {a.lev[0][0]}")
                g("s_cselect_b64 vcc, -1, 0")
                g(f"s_add_u32 s57, s57, {a.pacev if isv else a.pace}")
            cnt[0] += 1
            g(f"s_cbranch_vccz L_sk{cnt[0]}")
            g(f"s_waitcnt vmcnt({a.lev[0][1]-1})")
            for th, cap in a.lev[1:]:
                g(f"s_cmp_lt_i32 s56, {th}")
                g(f"s_cbranch_scc0 L_sk{cnt[0]}")
                g(f"s_waitcnt vmcnt({cap-1})")
            g.label(f"L_sk{cnt[0]}")
        issue1(isv or (last and i + W >= 8), (i + W) % 8)
        if a.pace and i % ps == ps - 1:
            g("s_memrealtime s[58:59]")
            if a.sync and (i + 1) in a.syncat and not last and not isv:
                g(f"ds_read_b32 v{vT}, v{vZ} offset:{LDS_T0}")
        return 1

    def shift():
        for r in range(6):
            g(f"v_mov_b32 v{T+r}, v{T+r+2}")

    def qk(last):
        T0, T1 = T + 6, T + 7
        for j in range(8):
            D = D0 if j % 2 == 0 else D1
            g(f"s_waitcnt vmcnt({W-1})")
            g(f"v_mfma_f32_16x16x32_bf16 {r4(D)}, {r4(KR+4*j)}, {r4(Q)}, 0")
            n = refill(0, j, last)
            if j == 0:
                shift()
            if j >= 1:
                jp = j - 1
                Dp = D0 if jp % 2 == 0 else D1
                q = jp & 3
                Tx = T0 if jp < 4 else T1
                x, y, z, w_ = [Dp + ((q + i) % 4) for i in range(4)]
                g(f"s_nop {6-n}")
                g(f"v_add_f32_dpp v{vA}, v{y}, v{x} row_ror:12 {DPPALL}")
                g(f"v_add_f32_dpp v{vB}, v{w_}, v{z} row_ror:12 {DPPALL}")
                g("s_nop 1")
                g(f"v_add_f32_dpp v{Tx}, v{vB}, v{vA} row_ror:8 row_mask:0xf bank_mask:0x{1<<q:x}")
        Dp = D1
        q = 3
        x, y, z, w_ = [Dp + ((q + i) % 4) for i in range(4)]
        g(f"v_add_f32_dpp v{vA}, v{y}, v{x} row_ror:12 {DPPALL}")
        g(f"v_add_f32_dpp v{vB}, v{w_}, v{z} row_ror:12 {DPPALL}")
        g("s_nop 1")
        g(f"v_add_f32_dpp v{T1}, v{vB}, v{vA} row_ror:8 row_mask:0xf bank_mask:0x{1<<q:x}")

    def softmax():
        g(f"v_max3_f32 v{vA}, v{T}, v{T+1}, v{T+2}")
        g(f"v_max3_f32 v{vB}, v{T+3}, v{T+4}, v{T+5}")
        g(f"v_max3_f32 v{vA}, v{vA}, v{T+6}, v{T+7}")
        g(f"v_max_f32 v{vA}, v{vA}, v{vB}")
        xreduce("v_max_f32", vA, vB)
        g(f"v_mul_f32 v{vM}, s25, v{vA}")
        for r in range(8):
            g(f"v_fma_f32 v{T+r}, v{T+r}, s25, -v{vM}")
        for r in range(8):
            g(f"v_exp_f32 v{T+r}, v{T+r}")
        for r in range(8):
            g(f"v_cvt_pk_bf16_f32 v{T+r}, v{T+r}, v{T+r}")
        for r in range(8):
            g(f"v_and_b32 v{T+r}, v{T+r}, v{vPM}")
        g(f"v_add_f32 v{vL}, v{T}, v{T+1}")
        g(f"v_add_f32 v{vA}, v{T+2}, v{T+3}")
        g(f"v_add_f32 v{vL}, v{vL}, v{T+4}")
        g(f"v_add_f32 v{vA}, v{vA}, v{T+5}")
        g(f"v_add_f32 v{vL}, v{vL}, v{T+6}")
        g(f"v_add_f32 v{vA}, v{vA}, v{T+7}")
        g(f"v_add_f32 v{vL}, v{vL}, v{vA}")
        xreduce("v_add_f32", vL, vB)
        g(f"ds_write_b64 v{vE}, {r2(vM)} offset:{LDS_ML}")
        if a.amid:
            g("s_waitcnt lgkmcnt(0)")
            g("s_barrier")

    def pv(last):
        jA = max(7 - W, -1)
        if last and jA < 0:
            g("s_waitcnt lgkmcnt(0)")
            g("s_barrier")
        for j in range(8):
            A = AS[j % 2]
            Tx = T if j < 4 else T + 1
            q = j & 3
            for r in range(4):
                g(f"v_mov_b32_dpp v{A+r}, v{Tx} {ror(4*(r-q))} row_mask:0xf bank_mask:0x{1<<r:x}")
            g(f"s_waitcnt vmcnt({min(W - 1, 7 - j) if last else W - 1})")
            g("s_nop 0")
            g(f"v_mfma_f32_16x16x32_bf16 {r4(ACC)}, {r4(A)}, {r4(KR+4*j)}, {r4(ACC)}")
            refill(1, j, last)
            if last and j == jA:
                g("s_waitcnt lgkmcnt(0)")
                g("s_barrier")
        if not last:
            shift()

    if not a.qfirst:
        g(f"s_waitcnt vmcnt({W-1})")
    g.label("L_loopk")
    qk(False)
    g("s_sub_u32 s40, s40, 1")
    g("s_cmp_lg_u32 s40, 0")
    g("s_cbranch_scc1 L_loopk")
    qk(True)
    softmax()
    g("s_mov_b32 s40, 3")
    g.label("L_loopv")
    pv(False)
    g("s_sub_u32 s40, s40, 1")
    g("s_cmp_lg_u32 s40, 0")
    g("s_cbranch_scc1 L_loopv")
    pv(True)
    g("s_nop 7")
    g(f"ds_write_b128 v{vOA}, {r4(ACC)} offset:{LDS_O}")
    if a.trace:
        g("s_memrealtime s[58:59]")
    g("s_waitcnt lgkmcnt(0)")
    g("s_barrier")
    if a.trace:
        g(f"v_writelane_b32 v{ST}, s58, m0")
        g("s_lshl_b32 s3, s2, 11")
        g("s_add_u32 s3, s3, 0x200000")
        g(f"v_lshl_add_u32 v{ST+1}, v0, 2, s3")
        g(f"global_store_dword v{ST+1}, v{ST}, s[20:21]")
    g("s_endpgm")

    g.label("L_helper")
    g.c("addresses")
    g("s_lshl_b32 s26, s23, 8")
    g(f"v_and_b32 v{vA}, 3, v{vLane}")
    g(f"v_lshlrev_b32 v{vB}, 6, v{vC}")
    g(f"v_lshl_add_u32 v{vB}, v{vA}, 4, v{vB}")
    g(f"v_add_u32 v{vB}, s26, v{vB}")
    g(f"v_and_b32 v{vX}, 15, v{vLane}")
    g(f"v_lshlrev_b32 v{vX}, 4, v{vX}")
    g(f"v_lshl_add_u32 v{vOut}, v{vC}, 2, v{vX}")
    g(f"v_add_u32 v{vC}, s26, v{vOut}")
    g(f"v_add_u32 v{vOut}, s24, v{vOut}")
    g("s_lshl_b32 s32, s23, 14")
    g("s_lshl_b32 s33, s37, 10")
    g("s_add_u32 s33, s33, s32")
    g(f"v_lshl_add_u32 v{vRec}, v{vLane}, 4, s33")
    g(f"v_bfe_u32 v{vX}, v{vLane}, 2, 3")
    g(f"v_xor_b32 v{vX}, s37, v{vX}")
    g(f"v_lshlrev_b32 v{vX}, 5, v{vX}")
    g(f"v_lshl_add_u32 v{vX}, v{vA}, 3, v{vX}")
    g("s_add_u32 s33, s32, 8192")
    g(f"v_add_u32 v{vMLA}, s33, v{vX}")
    g("s_lshl_b32 s34, s23, 3")
    g(f"v_mov_b32 v{vTkA}, s34")
    g("s_and_b32 s35, s2, 0xf8")
    g(f"v_mov_b32 v{vY+2}, s35")
    g(f"v_mov_b32 v{vY+1}, 0")
    for r in range(4):
        g(f"v_mov_b32 v{vX+r}, -1")
    g("s_waitcnt lgkmcnt(0)")
    if stamp:
        g("s_mov_b64 s[60:61], s[58:59]")
    if a.sync:
        g("s_or_b32 s58, s58, 1")
        g(f"v_mov_b32 v{vY}, s58")
        g("s_mov_b64 exec, 1")
        g(f"global_atomic_cmpswap v{vY+3}, v{vY+2}, {r2(vY)}, s[18:19] offset:4 sc0")
        g("s_mov_b64 exec, -1")
    g(f"global_load_dwordx4 {r4(Q)}, v{vE}, s[4:5]")
    g(f"global_load_dwordx4 {r4(D1)}, v{vB}, s[10:11]")
    g(f"global_load_dword v{vVT+1}, v{vC}, s[12:13]")
    g("s_load_dword s27, s[14:15], 0")
    g.c("mark own record empty")
    g(f"global_store_dwordx4 v{vRec}, {r4(vX)}, s[20:21] sc1")
    g("s_mov_b64 exec, 15")
    g(f"global_store_dwordx2 v{vMLA}, {r2(vX)}, s[20:21] sc1")
    g("s_mov_b64 exec, -1")
    for i in range(1, 8):
        g(f"v_xor_b32 v{vRA[i-1]}, {i*1024}, v{vRec}")
    if a.sync:
        g("s_waitcnt vmcnt(5)")
        g(f"v_mov_b32 v{vY+1}, 0")
        g("s_mov_b64 exec, 1")
        g(f"ds_write_b32 v{vY+1}, v{vY+3} offset:{LDS_T0}")
        g("s_mov_b64 exec, -1")
    g.c("tree token score")
    g("s_waitcnt vmcnt(2) lgkmcnt(0)")
    g(f"v_mfma_f32_16x16x32_bf16 {r4(D0)}, {r4(D1)}, {r4(Q)}, 0")
    g(f"v_lshlrev_b32 v{vVT}, 16, v{vVT+1}")
    g(f"v_and_b32 v{vVT+1}, 0xffff0000, v{vVT+1}")
    g("s_lshr_b32 s33, s23, 4")
    g("s_lshl_b32 s33, s33, 4")
    g("s_lshr_b32 s27, s27, s33")
    g("s_lshl_b32 s27, s27, 16")
    g("s_nop 3")
    g(f"v_add_f32_dpp v{vA}, v{D0+1}, v{D0} row_ror:12 {DPPALL}")
    g(f"v_add_f32_dpp v{vB}, v{D0+3}, v{D0+2} row_ror:12 {DPPALL}")
    g("s_nop 1")
    g(f"v_add_f32_dpp v{vA}, v{vB}, v{vA} row_ror:8 {DPPALL}")
    g("s_nop 1")
    g(f"v_mov_b32_dpp v{vMt}, v{vA} quad_perm:[0,1,2,3] row_mask:0xf bank_mask:0x1")
    g("s_nop 1")
    g(f"v_mov_b32_dpp v{vMt}, v{vA} row_ror:4 row_mask:0xf bank_mask:0x2")
    g("s_nop 1")
    g(f"v_mov_b32_dpp v{vMt}, v{vA} row_ror:8 row_mask:0xf bank_mask:0x4")
    g("s_nop 1")
    g(f"v_mov_b32_dpp v{vMt}, v{vA} row_ror:12 row_mask:0xf bank_mask:0x8")
    g(f"v_sub_f32 v{vB}, 1.0, s27")
    g(f"v_mul_f32 v{vB}, 0x{f32bits(MASKC):08x}, v{vB}")
    g(f"v_fma_f32 v{vMt}, v{vMt}, s25, v{vB}")
    g.c("election: the last of the 8 workgroups to have emptied its record collects")
    g(f"v_mov_b32 v{vY}, 1")
    g("s_waitcnt vmcnt(0)")
    g("s_mov_b64 exec, 1")
    g(f"global_atomic_add v{vY}, v{vTkA}, v{vY}, s[18:19] sc0")
    g("s_mov_b64 exec, -1")
    g(f"v_and_b32 v{vA}, 31, v{vLane}")
    g(f"v_lshlrev_b32 v{vTkA}, 3, v{vA}")
    g.l.pop()
    g(f"v_lshlrev_b32 v{Q}, 3, v{vA}")
    g(f"v_lshlrev_b32 v{Q+1}, 4, v{vLane}")
    g("s_waitcnt vmcnt(0)")
    g(f"v_readfirstlane_b32 s36, v{vY}")
    g("s_barrier")
    if stamp:
        g("s_memrealtime s[28:29]" if a.amid else "s_memrealtime s[62:63]")
    g(f"ds_read_b64 {r2(vM)}, v{Q} offset:{LDS_ML}")
    g("s_waitcnt lgkmcnt(0)")

    def lane_combine(extra):
        g(f"v_mov_b32 v{vX}, v{vM}")
        xreduce("v_max_f32", vX, vB, swap32=False)
        if extra:
            g(f"v_max_f32 v{vX}, v{vX}, v{vMt}")
            g(f"v_sub_f32 v{vC}, v{vMt}, v{vX}")
        g(f"v_sub_f32 v{vA}, v{vM}, v{vX}")
        if extra:
            g(f"v_exp_f32 v{vC}, v{vC}")
        g(f"v_exp_f32 v{vA}, v{vA}")
        g("s_nop 0")
        g(f"v_mul_f32 v{vX+1}, v{vA}, v{vL}")
        xreduce("v_add_f32", vX + 1, vB, swap32=False)
        if extra:
            g(f"v_add_f32 v{vX+1}, v{vX+1}, v{vC}")

    def readfactors(src, sbase):
        for i in range(8):
            g(f"v_readlane_b32 s{sbase+2*i}, v{src}, {4*i}")
            g(f"v_readlane_b32 s{sbase+2*i+1}, v{src}, {4*i+2}")

    def pk(op, dst, src, sp, acc=None):
        if acc is None:
            g(f"v_pk_mul_f32 {r2(dst)}, {r2(src)}, s[{sp}:{sp+1}] op_sel:[0,0] op_sel_hi:[1,0]")
            g(f"v_pk_mul_f32 {r2(dst+2)}, {r2(src+2)}, s[{sp}:{sp+1}] op_sel:[0,1] op_sel_hi:[1,1]")
        else:
            g(f"v_pk_fma_f32 {r2(dst)}, {r2(src)}, s[{sp}:{sp+1}], {r2(acc)} op_sel:[0,0,0] op_sel_hi:[1,0,1]")
            g(f"v_pk_fma_f32 {r2(dst+2)}, {r2(src+2)}, s[{sp}:{sp+1}], {r2(acc+2)} op_sel:[0,1,0] op_sel_hi:[1,1,1]")

    def local_o():
        g("s_barrier")
        if stamp:
            g("s_memrealtime s[98:99]")
        for w in range(NW):
            g(f"ds_read_b128 {r4(LO+4*w)}, v{Q+1} offset:{LDS_O+1024*w}")
        if stamp:
            g("s_waitcnt lgkmcnt(0)")
        for w in range(NW):
            g(f"s_waitcnt lgkmcnt({NW-1-w})")
            pk("x", ACC, LO + 4 * w, SG + 2 * w, None if w == 0 else ACC)

    def put_stamps(final):
        if not stamp:
            return
        g("s_waitcnt vmcnt(0)")
        g("s_memrealtime s[56:57]")
        g("s_lshl_b32 s3, s2, 6")
        g("s_add_u32 s3, s3, 0x100000")
        g(f"v_mov_b32 v{ST}, s3")
        g("s_getreg_b32 s54, hwreg(HW_REG_XCC_ID)")
        g("s_getreg_b32 s55, hwreg(HW_REG_HW_ID)")
        g("s_waitcnt lgkmcnt(0)")
        regs = [60, 61, 62, 63, 98, 99, 56, 57] + ([56, 57] if final else [None, None]) + [54, 55]
        for i, sr in enumerate(regs):
            g(f"v_mov_b32 v{ST+2+i}, " + ("0" if sr is None else f"s{sr}"))
        g(f"global_store_dwordx4 v{ST}, {r4(ST+2)}, s[20:21]")
        g(f"global_store_dwordx4 v{ST}, {r4(ST+6)}, s[20:21] offset:16")
        g(f"global_store_dwordx4 v{ST}, {r4(ST+10)}, s[20:21] offset:32")
        g(f"v_mov_b32 v{ST+1}, " + ("s38" if final else "0"))
        g(f"global_store_dword v{ST}, v{ST+1}, s[20:21] offset:48")
        g("s_nop 1")
        g(f"v_mov_b32 v{ST+2}, s28")
        g(f"v_mov_b32 v{ST+3}, s29")
        g(f"global_store_dwordx2 v{ST}, {r2(ST+2)}, s[20:21] offset:56")

    lane_combine(False)
    g("s_cmp_eq_u32 s36, 7")
    g("s_cbranch_scc1 L_collect")
    g(f"v_min_u32 v{vX}, -2, v{vX}")
    g(f"v_min_u32 v{vX+1}, -2, v{vX+1}")
    g("s_mov_b64 exec, 15")
    g(f"global_store_dwordx2 v{vMLA}, {r2(vX)}, s[20:21] sc1")
    g("s_mov_b64 exec, -1")
    readfactors(vA, SG)
    if a.amid:
        g("s_barrier")
        if stamp:
            g("s_memrealtime s[62:63]")
    local_o()
    for r in range(4):
        g(f"v_min_u32 v{ACC+r}, -2, v{ACC+r}")
    g(f"global_store_dwordx4 v{vRec}, {r4(ACC)}, s[20:21] sc1")
    put_stamps(False)
    g("s_endpgm")
    g.label("L_collect")
    g(f"v_min_u32 v{vM}, -2, v{vX}")
    g(f"v_min_u32 v{vL}, -2, v{vX+1}")
    g("s_mov_b32 s30, 0xfffffff0")
    g("s_mov_b32 s31, 0xfffffff0")
    g("s_mov_b64 exec, s[30:31]")
    g(f"global_load_dwordx2 {r2(vM)}, v{vMLA}, s[20:21] sc1")
    g("s_mov_b64 exec, -1")
    readfactors(vA, SG)
    g(f"s_mov_b32 s38, 0")
    g.label("L_mlpoll")
    g("s_waitcnt vmcnt(0)")
    g(f"v_max_u32 v{vA}, v{vM}, v{vL}")
    g(f"v_cmp_eq_u32 s[30:31], -1, v{vA}")
    g("s_add_u32 s38, s38, 1")
    g("s_cmp_eq_u64 s[30:31], 0")
    g("s_cbranch_scc1 L_mlok")
    g("s_mov_b64 exec, s[30:31]")
    g(f"global_load_dwordx2 {r2(vM)}, v{vMLA}, s[20:21] sc1")
    g("s_mov_b64 exec, -1")
    g(f"s_cmp_lt_u32 s38, {a.maxpoll}")
    g("s_cbranch_scc1 L_mlpoll")
    g("s_waitcnt vmcnt(0)")
    g.label("L_mlok")
    def oround(masked):
        for i in range(7):
            if masked:
                g(f"s_mov_b64 exec, s[{SM+2*i}:{SM+2*i+1}]")
            g(f"global_load_dwordx4 {r4(RO+4*i)}, v{vRA[i]}, s[20:21] sc1")
        if masked:
            g("s_mov_b64 exec, -1")
    if not a.amid:
        oround(False)
    lane_combine(True)
    g(f"v_rcp_f32 v{vB}, v{vX+1}")
    g("s_nop 1")
    g(f"v_mul_f32_dpp v{vA}, v{vB}, v{vA} quad_perm:[1,1,3,3] {DPPALL}")
    g(f"v_mul_f32_dpp v{vC}, v{vB}, v{vC} quad_perm:[1,1,3,3] {DPPALL}")
    readfactors(vA, SF)
    g(f"v_readlane_b32 s{STR}, v{vC}, 0")
    g(f"v_readlane_b32 s{STR+1}, v{vC}, 2")
    for i in range(7):
        g(f"s_mov_b64 s[{SM+2*i}:{SM+2*i+1}], -1")
    g(f"v_pk_mul_f32 {r2(vX)}, {r2(vVT)}, s[{STR}:{STR+1}] op_sel:[0,0] op_sel_hi:[1,0]")
    g(f"v_pk_mul_f32 {r2(vX+2)}, {r2(vVT)}, s[{STR}:{STR+1}] op_sel:[0,1] op_sel_hi:[1,1]")
    if a.amid:
        g("s_barrier")
        oround(False)
        if stamp:
            g("s_memrealtime s[62:63]")
    local_o()
    pk("x", ACC, ACC, SF, vX)
    g("s_lshl_b32 s38, s38, 16")
    for _ in range(a.depth - 2):
        oround(False)
    g.label("L_opoll")
    oround(True)
    g(f"s_waitcnt vmcnt({7*(a.depth-1)})")
    for i in range(7):
        pk("x", vY, RO + 4 * i, SF + 2 + 2 * i, ACC if i == 0 else vY)
    g(f"v_pk_add_f32 {r2(vX)}, {r2(vY)}, {r2(vY+2)}")
    g(f"v_cvt_pk_bf16_f32 v{D0}, v{vY}, v{vY+1}")
    g(f"v_cmp_u_f32 vcc, v{vX}, v{vX+1}")
    g(f"v_cvt_pk_bf16_f32 v{D0+1}, v{vY+2}, v{vY+3}")
    g("s_add_u32 s38, s38, 1")
    g("s_cmp_eq_u64 vcc, 0")
    g("s_cbranch_scc1 L_out")
    g.c("a NaN: find the lanes whose record words are still empty")
    g("s_mov_b64 s[30:31], 0")
    for i in range(7):
        g(f"v_max3_u32 v{vA}, v{RO+4*i}, v{RO+4*i+1}, v{RO+4*i+2}")
        g(f"v_max_u32 v{vA}, v{vA}, v{RO+4*i+3}")
        g(f"v_cmp_eq_u32 s[{SM+2*i}:{SM+2*i+1}], -1, v{vA}")
    g("s_and_b32 s3, s38, 0xffff")
    g(f"s_cmp_ge_u32 s3, {a.maxpoll}")
    g("s_cbranch_scc1 L_out")
    for i in range(7):
        g(f"s_or_b64 s[30:31], s[30:31], s[{SM+2*i}:{SM+2*i+1}]")
    g("s_cbranch_scc1 L_opoll")
    g.c("all words present (they may have landed after the trial sum): redo it once")
    for i in range(7):
        pk("x", vY, RO + 4 * i, SF + 2 + 2 * i, ACC if i == 0 else vY)
    g(f"v_cvt_pk_bf16_f32 v{D0}, v{vY}, v{vY+1}")
    g(f"v_cvt_pk_bf16_f32 v{D0+1}, v{vY+2}, v{vY+3}")
    g.label("L_out")
    of = (" " + a.outflags) if a.outflags else ""
    g(f"global_store_dword v{vOut}, v{D0}, s[16:17]{of}")
    g(f"global_store_dword v{vOut}, v{D0+1}, s[16:17] offset:256{of}")
    put_stamps(True)
    g.label("L_end")
    g("s_endpgm")

    assert nvgpr <= 168
    lds = max(LDS_T0 + 16, a.lds)
    nv = nvgpr
    out = HEADER
    out += f"; @launch grid=(256,1,1) block=({(NW+1)*64},1,1) lds={lds}\n"
    out += f""".amdgcn_target "amdgcn-amd-amdhsa--gfx950"
.text
.globl {NAME}_kernel
.p2align 8
.type {NAME}_kernel,@function
{NAME}_kernel:
"""
    out += g.text()
    out += f""".section .rodata,"a"
.p2align 6
.amdhsa_kernel {NAME}_kernel
  .amdhsa_next_free_vgpr {nv}
  .amdhsa_next_free_sgpr 100
  .amdhsa_accum_offset {(nv + 3) // 4 * 4}
  .amdhsa_group_segment_fixed_size 0
  .amdhsa_kernarg_size 72
  .amdhsa_user_sgpr_count 2
  .amdhsa_user_sgpr_kernarg_segment_ptr 1
  .amdhsa_system_sgpr_workgroup_id_x 1
.end_amdhsa_kernel
"""
    return out


if __name__ == "__main__":
    ap = argparse.ArgumentParser()
    ap.add_argument("-o", default=None)
    ap.add_argument("--ldflags", default="nt")
    ap.add_argument("--outflags", default="")
    ap.add_argument("--xcdmap", type=int, default=1)
    ap.add_argument("--win", type=int, default=5)
    ap.add_argument("--pat", default="lljjjwwwttsss")
    ap.add_argument("--rot", default="pair:0")
    ap.add_argument("--pace", type=int, default=110)
    ap.add_argument("--poff", type=int, default=150)
    ap.add_argument("--pstep", type=int, default=4)
    ap.add_argument("--ws", type=int, default=3)
    ap.add_argument("--ws2", type=int, default=2)
    ap.add_argument("--far", type=int, default=0)
    ap.add_argument("--lev", default="")
    ap.add_argument("--first", type=int, default=1000)
    ap.add_argument("--sync", type=int, default=1)
    ap.add_argument("--syncat", default="4")
    ap.add_argument("--amid", type=int, default=1)
    ap.add_argument("--trace", type=int, default=0)
    ap.add_argument("--only", type=lambda x: int(x, 0), default=255)
    ap.add_argument("--pacev", type=int, default=0)
    ap.add_argument("--syncmax", type=int, default=300)
    ap.add_argument("--depth", type=int, default=2)
    ap.add_argument("--qfirst", type=int, default=1)
    ap.add_argument("--maxpoll", type=int, default=20000)
    ap.add_argument("--lds", type=int, default=90000)
    ap.add_argument("--stamp", type=int, default=0)
    a = ap.parse_args()
    a.syncat = [int(x) for x in a.syncat.split(",")]
    a.pacev = a.pacev or a.pace
    if a.lev:
        a.lev = [tuple(int(y) for y in x.replace("m", "-").split(":")) for x in a.lev.split(",")]
    else:
        a.lev = [(0, a.ws)] + ([(-a.far, a.ws2)] if a.far else [])
    if a.rot == "none":
        a.rot = ""
    s = gen(a)
    if a.o:
        open(a.o, "w").write(s)
    else:
        sys.stdout.write(s)
```

```python
import sys, argparse, struct

NAME = "standalone__tree_speculative_verify_tree_attention_over_candidate_token_tree__decode"

HEADER = """; Kernarg layout for this problem (72 bytes, ptrs only, base s[0:1]):
"""

def f32bits(x):
    return struct.unpack("<I", struct.pack("<f", x))[0]

C1 = (128 ** -0.5) * 1.4426950408889634
MASKC = -1.0e9 * 1.4426950408889634
DPPALL = "row_mask:0xf bank_mask:0xf"
M32 = 0xffffffff


class G:
    def __init__(self):
        self.l = []
    def __call__(self, s):
        self.l.append("    " + s)
    def label(self, s):
        self.l.append(s + ":")
    def c(self, s):
        self.l.append("    ; " + s)
    def text(self):
        return "\n".join(self.l) + "\n"


def r4(b):
    return f"v[{b}:{b+3}]"
def r2(b):
    return f"v[{b}:{b+1}]"


def gen(a):
    NW = 8
    W = a.win
    ldf = (" " + a.ldflags) if a.ldflags else ""
    stamp = a.stamp
    g = G()
    vLane, vWave, vA, vB, vC = 1, 2, 3, 4, 5
    vK, vV = 6, 7
    Q = 8
    ACC = 12
    D0, D1 = 16, 20
    T = 72
    vM, vL, vPM = 26, 27, 28
    vAl, vOA, vE = 29, 30, 31
    AS = [32, 36]
    KR, VR = 40, 72
    vZ, vT = 104, 105
    ST = 106
    nvgpr = ST + (14 if stamp else 0)
    vMt, vVT, vRec, vMLA, vOut, vTkA = 6, 24, 7, 28, 29, 30
    vX = 32
    vY = 36
    LO = KR
    RO = VR
    vRA = [100, 101, 102, 103, 104, 105, 31]
    LDS_O, LDS_ML, LDS_T0 = 0, 8192, 8192 + 256
    SG, SF, STR = 64, 80, 96
    SM = 40

    pat = a.pat
    assert len(pat) == 13 and sorted(pat) == sorted("lljjjwwwttsss"), pat
    pos = {c: [8 + i for i, x in enumerate(pat) if x == c] for c in "ljwts"}
    def spread(v, c):
        return sum(((v >> i) & 1) << b for i, b in enumerate(pos[c]))
    joff = [spread(j, "j") for j in range(8)]
    jb = []
    b = 4096 + joff[0]
    for j in range(8):
        if not (-4096 <= joff[j] - b <= 4095):
            b = joff[j] + 4096
        jb.append(b)
    ta = spread(1, "t")
    tB = spread(2, "t")
    c0 = (jb[0] - jb[7]) & M32
    d_even = (ta + c0) & M32
    d_odd = (tB - ta + c0) & M32

    g("s_cmp_ge_u32 s2, 256")
    g("s_cbranch_scc1 L_end")
    if a.only != 255:
        g("s_and_b32 s3, s2, 7")
        g(f"s_lshr_b32 s3, {a.only}, s3")
        g("s_and_b32 s3, s3, 1")
        g("s_cbranch_scc0 L_end")
    g("s_memrealtime s[58:59]")
    g("s_load_dwordx16 s[4:19], s[0:1], 0")
    g("s_load_dwordx2 s[20:21], s[0:1], 64")
    g(f"v_and_b32 v{vLane}, 63, v0")
    g(f"v_lshrrev_b32 v{vWave}, 6, v0")
    g.c("s23 = (batch, kv head) pair, s37 = key slot")
    if a.xcdmap == 1:
        g("s_and_b32 s23, s2, 7")
        g("s_lshl_b32 s23, s23, 2")
        g("s_bfe_u32 s3, s2, 0x20003")
        g("s_add_u32 s23, s23, s3")
        g("s_lshr_b32 s37, s2, 5")
    else:
        g("s_lshr_b32 s23, s2, 3")
        g("s_and_b32 s37, s2, 7")
    g(f"v_readfirstlane_b32 s22, v{vWave}")
    g.c("Q offset: pair*512 + ((l>>1)&1)*256 + (l>>4)*64 + ((l>>2)&3)*16")
    g(f"v_bfe_u32 v{vB}, v{vLane}, 2, 2")
    g(f"v_lshrrev_b32 v{vC}, 4, v{vLane}")
    g("s_lshl_b32 s24, s23, 9")
    g(f"v_lshlrev_b32 v{vE}, 6, v{vC}")
    g(f"v_lshl_add_u32 v{vE}, v{vB}, 4, v{vE}")
    g(f"v_bfe_u32 v{vA}, v{vLane}, 1, 1")
    g(f"v_lshl_add_u32 v{vE}, v{vA}, 8, v{vE}")
    g(f"v_add_u32 v{vE}, s24, v{vE}")
    g(f"s_mov_b32 s25, 0x{f32bits(C1):08x}")
    g("s_cmp_eq_u32 s22, 8")
    g("s_cbranch_scc1 L_helper")

    g("s_lshl_b32 s3, s23, 21")
    g(f"s_add_u32 s3, s3, {jb[0]}")
    g("s_mov_b32 s40, 3")
    def sspread(src, c):
        p = pos[c]
        if p == list(range(p[0], p[0] + len(p))):
            g(f"s_lshl_b32 s43, {src}, {p[0]}")
            g("s_add_u32 s3, s3, s43")
        else:
            for i, b in enumerate(p):
                g(f"s_bfe_u32 s43, {src}, 0x{(1<<16)|i:x}")
                g(f"s_lshl_b32 s43, s43, {b}")
                g("s_add_u32 s3, s3, s43")
    sspread("s37", "s")
    sspread("s22", "w")
    if a.rot:
        src, sh = a.rot.split(":")
        src = {"wg": "s2", "wave": "s22", "slot": "s37", "pair": "s23"}[src]
        g(f"s_bfe_u32 s44, {src}, 0x{(2 << 16) | int(sh):x}")
        sspread("s44", "t")
    lp = pos["l"]
    if lp == [8, 9]:
        g(f"v_lshl_add_u32 v{vV}, v{vLane}, 4, s3")
        g(f"v_lshl_add_u32 v{vA}, v{vB}, 8, s3")
    else:
        g(f"v_and_b32 v{vV}, 15, v{vLane}")
        g(f"v_lshl_add_u32 v{vV}, v{vV}, 4, s3")
        g(f"v_bfe_u32 v{vA}, v{vLane}, 4, 1")
        g(f"v_lshl_add_u32 v{vV}, v{vA}, {lp[0]}, v{vV}")
        g(f"v_bfe_u32 v{vA}, v{vLane}, 5, 1")
        g(f"v_lshl_add_u32 v{vV}, v{vA}, {lp[1]}, v{vV}")
        g(f"v_bfe_u32 v{vA}, v{vLane}, 2, 1")
        g(f"v_lshl_add_u32 v{vK}, v{vA}, {lp[0]}, s3")
        g(f"v_bfe_u32 v{vA}, v{vLane}, 3, 1")
        g(f"v_lshl_add_u32 v{vA}, v{vA}, {lp[1]}, v{vK}")
    g(f"v_lshl_add_u32 v{vA}, v{vC}, 6, v{vA}")
    g(f"v_and_b32 v{vK}, 3, v{vLane}")
    g(f"v_lshl_add_u32 v{vK}, v{vK}, 4, v{vA}")
    if a.rot:
        g("s_and_b32 s43, s44, 1")
        g(f"s_mov_b32 s46, 0x{ta:x}")
        g(f"s_cselect_b32 s46, 0x{(-ta) & M32:x}, s46")
        g("s_and_b32 s43, s44, 2")
        g(f"s_mov_b32 s55, 0x{tB:x}")
        g(f"s_cselect_b32 s55, 0x{(-tB) & M32:x}, s55")
        g("s_sub_u32 s55, s55, s46")
        if c0:
            g(f"s_add_u32 s55, s55, 0x{c0:x}")
            g(f"s_add_u32 s46, s46, 0x{c0:x}")
        g("s_xor_b32 s55, s55, s46")
        g("s_mov_b32 s47, s46")
    elif d_even != d_odd:
        g(f"s_mov_b32 s46, 0x{d_even:x}")
        g(f"s_mov_b32 s47, 0x{d_even:x}")
    g("s_waitcnt lgkmcnt(0)")

    def issue1(isv, j):
        ar, base = (vV, "s[8:9]") if isv else (vK, "s[6:7]")
        g(f"global_load_dwordx4 {r4(KR+4*j)}, v{ar}, {base} offset:{joff[j]-jb[j]}{ldf}")
        if j < 7:
            if jb[j + 1] != jb[j]:
                g(f"v_add_u32 v{ar}, 0x{(jb[j+1] - jb[j]) & M32:x}, v{ar}")
        elif d_even == d_odd and not a.rot:
            g(f"v_add_u32 v{ar}, 0x{d_even:x}, v{ar}")
        else:
            sd = "s47" if isv else "s46"
            g(f"v_add_u32 v{ar}, {sd}, v{ar}")
            g(f"s_xor_b32 {sd}, {sd}, " + ("s55" if a.rot else f"0x{d_even ^ d_odd:x}"))

    assert W <= 8
    if a.qfirst:
        g(f"global_load_dwordx4 {r4(Q)}, v{vE}, s[4:5]")
        for i in range(W):
            issue1(0, i)
    else:
        issue1(0, 0)
        g(f"global_load_dwordx4 {r4(Q)}, v{vE}, s[4:5]")
        for i in range(1, W):
            issue1(0, i)
    g("s_mov_b32 s54, s58")
    g("s_mov_b32 s53, s58")
    g(f"s_mov_b32 s57, {a.poff}")
    g(f"s_add_u32 s58, s58, {a.poff + a.first}")
    g(f"v_and_b32 v{vA}, 1, v{vLane}")
    g(f"v_lshlrev_b32 v{vA}, 4, v{vA}")
    g(f"v_mov_b32 v{vB}, 0xffff")
    g(f"v_lshlrev_b32 v{vPM}, v{vA}, v{vB}")
    for s in AS:
        for r in range(4):
            g(f"v_mov_b32 v{s+r}, 0")
    for r in range(4):
        g(f"v_mov_b32 v{ACC+r}, 0")
    g(f"v_lshlrev_b32 v{vOA}, 4, v0")
    g(f"v_and_b32 v{vE}, 3, v{vLane}")
    g(f"v_lshlrev_b32 v{vE}, 3, v{vE}")
    g(f"v_lshl_add_u32 v{vE}, v{vWave}, 5, v{vE}")
    g(f"v_mov_b32 v{vZ}, 0")
    if a.trace:
        g(f"v_mov_b32 v{ST}, s54")
        g("s_mov_b32 m0, 1")

    def xreduce(op, x, y, swap32=True):
        g("s_nop 1")
        g(f"{op}_dpp v{y}, v{x}, v{x} row_ror:4 {DPPALL}")
        g("s_nop 1")
        g(f"{op}_dpp v{x}, v{y}, v{y} row_ror:8 {DPPALL}")
        g(f"v_mov_b32 v{y}, v{x}")
        g("s_nop 1")
        g(f"v_permlane16_swap_b32 v{x}, v{y}")
        g(f"{op} v{x}, v{x}, v{y}")
        if swap32:
            g(f"v_mov_b32 v{y}, v{x}")
            g("s_nop 1")
            g(f"v_permlane32_swap_b32 v{x}, v{y}")
            g(f"{op} v{x}, v{x}, v{y}")

    def ror(n):
        n %= 16
        return "quad_perm:[0,1,2,3]" if n == 0 else f"row_ror:{n}"

    cnt = [0]
    def refill(isv, i, last):
        if isv and last and i + W >= 8:
            return 0
        ps = a.pstep
        if a.pace:
            if i % ps == 0:
                g("s_waitcnt lgkmcnt(0)")
                if a.trace:
                    g(f"v_writelane_b32 v{ST}, s58, m0")
                    g("s_add_u32 m0, m0, 1")
                if a.sync and i in a.syncat and not last and not isv:
                    g(f"v_readfirstlane_b32 s52, v{vT}")
                    g("s_sub_u32 s56, s54, s52")
                    g(f"s_cmp_lt_u32 s56, {a.syncmax}")
                    g("s_cselect_b32 s53, s52, s53")
                g("s_sub_u32 s56, s58, s53")
                g("s_sub_u32 s56, s56, s57")
                g(f"s_cmp_lt_i32 s56, {a.lev[0][0]}")
                g("s_cselect_b64 vcc, -1, 0")
                p8 = a.p8v if isv else a.p8
                g(f"s_add_u32 s57, s57, {(i + ps) * p8 // 8 - i * p8 // 8}")
            cnt[0] += 1
            g(f"s_cbranch_vccz L_sk{cnt[0]}")
            g(f"s_waitcnt vmcnt({a.lev[0][1]-1})")
            for th, cap in a.lev[1:]:
                g(f"s_cmp_lt_i32 s56, {th}")
                g(f"s_cbranch_scc0 L_sk{cnt[0]}")
                g(f"s_waitcnt vmcnt({cap-1})")
            g.label(f"L_sk{cnt[0]}")
        issue1(isv or (last and i + W >= 8), (i + W) % 8)
        if a.pace and i % ps == ps - 1:
            g("s_memrealtime s[58:59]")
            if a.sync and (i + 1) in a.syncat and not last and not isv:
                g(f"ds_read_b32 v{vT}, v{vZ} offset:{LDS_T0}")
        return 1

    def shift():
        for r in range(6):
            g(f"v_mov_b32 v{T+r}, v{T+r+2}")

    def qk(last):
        T0, T1 = T + 6, T + 7
        for j in range(8):
            D = D0 if j % 2 == 0 else D1
            g(f"s_waitcnt vmcnt({W-1})")
            g(f"v_mfma_f32_16x16x32_bf16 {r4(D)}, {r4(KR+4*j)}, {r4(Q)}, 0")
            n = refill(0, j, last)
            if j == 0:
                shift()
            if j >= 1:
                jp = j - 1
                Dp = D0 if jp % 2 == 0 else D1
                q = jp & 3
                Tx = T0 if jp < 4 else T1
                x, y, z, w_ = [Dp + ((q + i) % 4) for i in range(4)]
                g(f"s_nop {6-n}")
                g(f"v_add_f32_dpp v{vA}, v{y}, v{x} row_ror:12 {DPPALL}")
                g(f"v_add_f32_dpp v{vB}, v{w_}, v{z} row_ror:12 {DPPALL}")
                g("s_nop 1")
                g(f"v_add_f32_dpp v{Tx}, v{vB}, v{vA} row_ror:8 row_mask:0xf bank_mask:0x{1<<q:x}")
        Dp = D1
        q = 3
        x, y, z, w_ = [Dp + ((q + i) % 4) for i in range(4)]
        g(f"v_add_f32_dpp v{vA}, v{y}, v{x} row_ror:12 {DPPALL}")
        g(f"v_add_f32_dpp v{vB}, v{w_}, v{z} row_ror:12 {DPPALL}")
        g("s_nop 1")
        g(f"v_add_f32_dpp v{T1}, v{vB}, v{vA} row_ror:8 row_mask:0xf bank_mask:0x{1<<q:x}")

    def softmax():
        g(f"v_max3_f32 v{vA}, v{T}, v{T+1}, v{T+2}")
        g(f"v_max3_f32 v{vB}, v{T+3}, v{T+4}, v{T+5}")
        g(f"v_max3_f32 v{vA}, v{vA}, v{T+6}, v{T+7}")
        g(f"v_max_f32 v{vA}, v{vA}, v{vB}")
        xreduce("v_max_f32", vA, vB)
        g(f"v_mul_f32 v{vM}, s25, v{vA}")
        for r in range(8):
            g(f"v_fma_f32 v{T+r}, v{T+r}, s25, -v{vM}")
        for r in range(8):
            g(f"v_exp_f32 v{T+r}, v{T+r}")
        for r in range(8):
            g(f"v_cvt_pk_bf16_f32 v{T+r}, v{T+r}, v{T+r}")
        for r in range(8):
            g(f"v_and_b32 v{T+r}, v{T+r}, v{vPM}")
        g(f"v_add_f32 v{vL}, v{T}, v{T+1}")
        g(f"v_add_f32 v{vA}, v{T+2}, v{T+3}")
        g(f"v_add_f32 v{vL}, v{vL}, v{T+4}")
        g(f"v_add_f32 v{vA}, v{vA}, v{T+5}")
        g(f"v_add_f32 v{vL}, v{vL}, v{T+6}")
        g(f"v_add_f32 v{vA}, v{vA}, v{T+7}")
        g(f"v_add_f32 v{vL}, v{vL}, v{vA}")
        xreduce("v_add_f32", vL, vB)
        g(f"ds_write_b64 v{vE}, {r2(vM)} offset:{LDS_ML}")
        if a.amid:
            g("s_waitcnt lgkmcnt(0)")
            g("s_barrier")

    def pv(last):
        jA = max(7 - W, -1)
        if last and jA < 0:
            g("s_waitcnt lgkmcnt(0)")
            g("s_barrier")
        for j in range(8):
            A = AS[j % 2]
            Tx = T if j < 4 else T + 1
            q = j & 3
            for r in range(4):
                g(f"v_mov_b32_dpp v{A+r}, v{Tx} {ror(4*(r-q))} row_mask:0xf bank_mask:0x{1<<r:x}")
            g(f"s_waitcnt vmcnt({min(W - 1, 7 - j) if last else W - 1})")
            g("s_nop 0")
            g(f"v_mfma_f32_16x16x32_bf16 {r4(ACC)}, {r4(A)}, {r4(KR+4*j)}, {r4(ACC)}")
            refill(1, j, last)
            if last and j == jA:
                g("s_waitcnt lgkmcnt(0)")
                g("s_barrier")
        if not last:
            shift()

    if not a.qfirst:
        g(f"s_waitcnt vmcnt({W-1})")
    g.label("L_loopk")
    qk(False)
    g("s_sub_u32 s40, s40, 1")
    g("s_cmp_lg_u32 s40, 0")
    g("s_cbranch_scc1 L_loopk")
    qk(True)
    softmax()
    g("s_mov_b32 s40, 3")
    g.label("L_loopv")
    pv(False)
    g("s_sub_u32 s40, s40, 1")
    g("s_cmp_lg_u32 s40, 0")
    g("s_cbranch_scc1 L_loopv")
    pv(True)
    g("s_nop 7")
    g(f"ds_write_b128 v{vOA}, {r4(ACC)} offset:{LDS_O}")
    if a.trace:
        g("s_memrealtime s[58:59]")
    g("s_waitcnt lgkmcnt(0)")
    g("s_barrier")
    if a.trace:
        g(f"v_writelane_b32 v{ST}, s58, m0")
        g("s_lshl_b32 s3, s2, 11")
        g("s_add_u32 s3, s3, 0x200000")
        g(f"v_lshl_add_u32 v{ST+1}, v0, 2, s3")
        g(f"global_store_dword v{ST+1}, v{ST}, s[20:21]")
    g("s_endpgm")

    g.label("L_helper")
    g.c("addresses")
    g("s_lshl_b32 s26, s23, 8")
    g(f"v_and_b32 v{vA}, 3, v{vLane}")
    g(f"v_lshlrev_b32 v{vB}, 6, v{vC}")
    g(f"v_lshl_add_u32 v{vB}, v{vA}, 4, v{vB}")
    g(f"v_add_u32 v{vB}, s26, v{vB}")
    g(f"v_and_b32 v{vX}, 15, v{vLane}")
    g(f"v_lshlrev_b32 v{vX}, 4, v{vX}")
    g(f"v_lshl_add_u32 v{vOut}, v{vC}, 2, v{vX}")
    g(f"v_add_u32 v{vC}, s26, v{vOut}")
    g(f"v_add_u32 v{vOut}, s24, v{vOut}")
    g("s_lshl_b32 s32, s23, 14")
    g("s_lshl_b32 s33, s37, 10")
    g("s_add_u32 s33, s33, s32")
    g(f"v_lshl_add_u32 v{vRec}, v{vLane}, 4, s33")
    g(f"v_bfe_u32 v{vX}, v{vLane}, 2, 3")
    g(f"v_xor_b32 v{vX}, s37, v{vX}")
    g(f"v_lshlrev_b32 v{vX}, 5, v{vX}")
    g(f"v_lshl_add_u32 v{vX}, v{vA}, 3, v{vX}")
    g("s_add_u32 s33, s32, 8192")
    g(f"v_add_u32 v{vMLA}, s33, v{vX}")
    g("s_lshl_b32 s34, s23, 3")
    g(f"v_mov_b32 v{vTkA}, s34")
    g("s_and_b32 s35, s2, 0xf8")
    g(f"v_mov_b32 v{vY+2}, s35")
    g(f"v_mov_b32 v{vY+1}, 0")
    for r in range(4):
        g(f"v_mov_b32 v{vX+r}, -1")
    g("s_waitcnt lgkmcnt(0)")
    if stamp:
        g("s_mov_b64 s[60:61], s[58:59]")
    if a.sync:
        g("s_or_b32 s58, s58, 1")
        g(f"v_mov_b32 v{vY}, s58")
        g("s_mov_b64 exec, 1")
        g(f"global_atomic_cmpswap v{vY+3}, v{vY+2}, {r2(vY)}, s[18:19] offset:4 sc0")
        g("s_mov_b64 exec, -1")
    g(f"global_load_dwordx4 {r4(Q)}, v{vE}, s[4:5]")
    g(f"global_load_dwordx4 {r4(D1)}, v{vB}, s[10:11]")
    g(f"global_load_dword v{vVT+1}, v{vC}, s[12:13]")
    g("s_load_dword s27, s[14:15], 0")
    g.c("mark own record empty")
    if a.nosent:
        g(f"global_load_dword v{vY+1}, v{vC}, s[12:13]")
        g(f"global_load_dword v{vY+1}, v{vC}, s[12:13]")
    else:
        g(f"global_store_dwordx4 v{vRec}, {r4(vX)}, s[20:21] sc1")
        g("s_mov_b64 exec, 15")
        g(f"global_store_dwordx2 v{vMLA}, {r2(vX)}, s[20:21] sc1")
        g("s_mov_b64 exec, -1")
    for i in range(1, 8):
        g(f"v_xor_b32 v{vRA[i-1]}, {i*1024}, v{vRec}")
    if a.sync:
        g("s_waitcnt vmcnt(5)")
        g(f"v_mov_b32 v{vY+1}, 0")
        g("s_mov_b64 exec, 1")
        g(f"ds_write_b32 v{vY+1}, v{vY+3} offset:{LDS_T0}")
        g("s_mov_b64 exec, -1")
    g.c("tree token score")
    g("s_waitcnt vmcnt(2) lgkmcnt(0)")
    g(f"v_mfma_f32_16x16x32_bf16 {r4(D0)}, {r4(D1)}, {r4(Q)}, 0")
    g(f"v_lshlrev_b32 v{vVT}, 16, v{vVT+1}")
    g(f"v_and_b32 v{vVT+1}, 0xffff0000, v{vVT+1}")
    g("s_lshr_b32 s33, s23, 4")
    g("s_lshl_b32 s33, s33, 4")
    g("s_lshr_b32 s27, s27, s33")
    g("s_lshl_b32 s27, s27, 16")
    g("s_nop 3")
    g(f"v_add_f32_dpp v{vA}, v{D0+1}, v{D0} row_ror:12 {DPPALL}")
    g(f"v_add_f32_dpp v{vB}, v{D0+3}, v{D0+2} row_ror:12 {DPPALL}")
    g("s_nop 1")
    g(f"v_add_f32_dpp v{vA}, v{vB}, v{vA} row_ror:8 {DPPALL}")
    g("s_nop 1")
    g(f"v_mov_b32_dpp v{vMt}, v{vA} quad_perm:[0,1,2,3] row_mask:0xf bank_mask:0x1")
    g("s_nop 1")
    g(f"v_mov_b32_dpp v{vMt}, v{vA} row_ror:4 row_mask:0xf bank_mask:0x2")
    g("s_nop 1")
    g(f"v_mov_b32_dpp v{vMt}, v{vA} row_ror:8 row_mask:0xf bank_mask:0x4")
    g("s_nop 1")
    g(f"v_mov_b32_dpp v{vMt}, v{vA} row_ror:12 row_mask:0xf bank_mask:0x8")
    g(f"v_sub_f32 v{vB}, 1.0, s27")
    g(f"v_mul_f32 v{vB}, 0x{f32bits(MASKC):08x}, v{vB}")
    g(f"v_fma_f32 v{vMt}, v{vMt}, s25, v{vB}")
    g.c("election: the last of the 8 workgroups to have emptied its record collects")
    if a.l2fast:
        g.c("one arrival counter nibble per XCD")
        g("s_getreg_b32 s39, hwreg(HW_REG_XCC_ID, 0, 3)")
        g("s_lshl_b32 s39, s39, 2")
        g("s_lshl_b32 s39, 1, s39")
        g(f"v_mov_b32 v{vY}, s39")
        g("s_lshl_b32 s39, s39, 3")
    else:
        g(f"v_mov_b32 v{vY}, 1")
    g("s_waitcnt vmcnt(0)")
    g("s_mov_b64 exec, 1")
    g(f"global_atomic_add v{vY}, v{vTkA}, v{vY}, s[18:19] sc0")
    g("s_mov_b64 exec, -1")
    g(f"v_and_b32 v{vA}, 31, v{vLane}")
    g(f"v_lshlrev_b32 v{vTkA}, 3, v{vA}")
    g.l.pop()
    g(f"v_lshlrev_b32 v{Q}, 3, v{vA}")
    g(f"v_lshlrev_b32 v{Q+1}, 4, v{vLane}")
    g("s_waitcnt vmcnt(0)")
    g(f"v_readfirstlane_b32 s36, v{vY}")
    if a.l2fast:
        assert a.amid
        g("s_lshr_b32 s35, s36, 4")
        g("s_and_b32 s35, s35, 0x0f0f0f0f")
        g("s_and_b32 s36, s36, 0x0f0f0f0f")
        g("s_add_u32 s36, s36, s35")
        g("s_mul_i32 s36, s36, 0x01010101")
        g("s_lshr_b32 s36, s36, 24")
    g("s_barrier")
    if stamp:
        g("s_memrealtime s[28:29]" if a.amid else "s_memrealtime s[62:63]")
    g(f"ds_read_b64 {r2(vM)}, v{Q} offset:{LDS_ML}")
    g("s_waitcnt lgkmcnt(0)")

    def lane_combine(extra):
        g(f"v_mov_b32 v{vX}, v{vM}")
        xreduce("v_max_f32", vX, vB, swap32=False)
        if extra:
            g(f"v_max_f32 v{vX}, v{vX}, v{vMt}")
            g(f"v_sub_f32 v{vC}, v{vMt}, v{vX}")
        g(f"v_sub_f32 v{vA}, v{vM}, v{vX}")
        if extra:
            g(f"v_exp_f32 v{vC}, v{vC}")
        g(f"v_exp_f32 v{vA}, v{vA}")
        g("s_nop 0")
        g(f"v_mul_f32 v{vX+1}, v{vA}, v{vL}")
        xreduce("v_add_f32", vX + 1, vB, swap32=False)
        if extra:
            g(f"v_add_f32 v{vX+1}, v{vX+1}, v{vC}")

    def readfactors(src, sbase):
        for i in range(8):
            g(f"v_readlane_b32 s{sbase+2*i}, v{src}, {4*i}")
            g(f"v_readlane_b32 s{sbase+2*i+1}, v{src}, {4*i+2}")

    def pk(op, dst, src, sp, acc=None):
        if acc is None:
            g(f"v_pk_mul_f32 {r2(dst)}, {r2(src)}, s[{sp}:{sp+1}] op_sel:[0,0] op_sel_hi:[1,0]")
            g(f"v_pk_mul_f32 {r2(dst+2)}, {r2(src+2)}, s[{sp}:{sp+1}] op_sel:[0,1] op_sel_hi:[1,1]")
        else:
            g(f"v_pk_fma_f32 {r2(dst)}, {r2(src)}, s[{sp}:{sp+1}], {r2(acc)} op_sel:[0,0,0] op_sel_hi:[1,0,1]")
            g(f"v_pk_fma_f32 {r2(dst+2)}, {r2(src+2)}, s[{sp}:{sp+1}], {r2(acc+2)} op_sel:[0,1,0] op_sel_hi:[1,1,1]")

    def local_o():
        g("s_barrier")
        if stamp:
            g("s_memrealtime s[98:99]")
        for w in range(NW):
            g(f"ds_read_b128 {r4(LO+4*w)}, v{Q+1} offset:{LDS_O+1024*w}")
        if stamp:
            g("s_waitcnt lgkmcnt(0)")
        for w in range(NW):
            g(f"s_waitcnt lgkmcnt({NW-1-w})")
            pk("x", ACC, LO + 4 * w, SG + 2 * w, None if w == 0 else ACC)

    def put_stamps(final):
        if not stamp:
            return
        g("s_waitcnt vmcnt(0)")
        g("s_memrealtime s[56:57]")
        g("s_lshl_b32 s3, s2, 6")
        g("s_add_u32 s3, s3, 0x100000")
        g(f"v_mov_b32 v{ST}, s3")
        g("s_getreg_b32 s54, hwreg(HW_REG_XCC_ID)")
        g("s_getreg_b32 s55, hwreg(HW_REG_HW_ID)")
        g("s_waitcnt lgkmcnt(0)")
        regs = [60, 61, 62, 63, 98, 99, 56, 57] + ([56, 57] if final else [None, None]) + [54, 55]
        for i, sr in enumerate(regs):
            g(f"v_mov_b32 v{ST+2+i}, " + ("0" if sr is None else f"s{sr}"))
        g(f"global_store_dwordx4 v{ST}, {r4(ST+2)}, s[20:21]")
        g(f"global_store_dwordx4 v{ST}, {r4(ST+6)}, s[20:21] offset:16")
        g(f"global_store_dwordx4 v{ST}, {r4(ST+10)}, s[20:21] offset:32")
        g(f"v_mov_b32 v{ST+1}, " + ("s38" if final else "0"))
        g(f"global_store_dword v{ST}, v{ST+1}, s[20:21] offset:48")
        g("s_nop 1")
        g(f"v_mov_b32 v{ST+2}, s28")
        g(f"v_mov_b32 v{ST+3}, s29")
        g(f"global_store_dwordx2 v{ST}, {r2(ST+2)}, s[20:21] offset:56")

    lane_combine(False)
    g("s_cmp_eq_u32 s36, 7")
    g("s_cbranch_scc1 L_collect")
    g(f"v_min_u32 v{vX}, -2, v{vX}")
    g(f"v_min_u32 v{vX+1}, -2, v{vX+1}")
    g("s_mov_b64 exec, 15")
    g(f"global_store_dwordx2 v{vMLA}, {r2(vX)}, s[20:21] sc1")
    g("s_mov_b64 exec, -1")
    if a.l2fast:
        g(f"global_load_dword v{vY}, v{vTkA}, s[18:19] sc1")
    readfactors(vA, SG)
    if a.l2fast:
        g("s_waitcnt vmcnt(0)")
        g(f"v_readfirstlane_b32 s35, v{vY}")
    def resent():
        g("s_cmp_eq_u32 s35, s39")
        g("s_cbranch_scc0 L_far0")
        g(f"global_store_dwordx4 v{vRec}, {r4(vX)}, s[20:21]")
        g.label("L_far0")
    if a.resent:
        for r in range(4):
            g(f"v_mov_b32 v{vX+r}, -1")
    if a.resent == 2:
        resent()
    if a.amid:
        g("s_barrier")
        if stamp:
            g("s_memrealtime s[62:63]")
    if a.resent == 1:
        resent()
    local_o()
    for r in range(4):
        g(f"v_min_u32 v{ACC+r}, -2, v{ACC+r}")
    if a.l2fast:
        g.c("all 8 workgroups of this pair run on this XCD: hand over through its L2")
        g("s_cmp_eq_u32 s35, s39")
        g("s_cbranch_scc0 L_far")
        g(f"global_store_dwordx4 v{vRec}, {r4(ACC)}, s[20:21]" + (" " + a.l2flag if a.l2flag else ""))
        put_stamps(False)
        g("s_endpgm")
        g.label("L_far")
    g(f"global_store_dwordx4 v{vRec}, {r4(ACC)}, s[20:21] sc1")
    put_stamps(False)
    g("s_endpgm")
    g.label("L_collect")
    g(f"v_min_u32 v{vM}, -2, v{vX}")
    g(f"v_min_u32 v{vL}, -2, v{vX+1}")
    g("s_mov_b32 s30, 0xfffffff0")
    g("s_mov_b32 s31, 0xfffffff0")
    g("s_mov_b64 exec, s[30:31]")
    g(f"global_load_dwordx2 {r2(vM)}, v{vMLA}, s[20:21] sc1")
    g("s_mov_b64 exec, -1")
    if a.otouch:
        g(f"global_load_dword v{vY}, v{vOut}, s[16:17]")
    readfactors(vA, SG)
    g(f"s_mov_b32 s38, 0")
    g.label("L_mlpoll")
    g("s_waitcnt vmcnt(0)")
    g(f"v_max_u32 v{vA}, v{vM}, v{vL}")
    g(f"v_cmp_eq_u32 s[30:31], -1, v{vA}")
    g("s_add_u32 s38, s38, 1")
    g("s_cmp_eq_u64 s[30:31], 0")
    g("s_cbranch_scc1 L_mlok")
    g("s_mov_b64 exec, s[30:31]")
    g(f"global_load_dwordx2 {r2(vM)}, v{vMLA}, s[20:21] sc1")
    g("s_mov_b64 exec, -1")
    g(f"s_cmp_lt_u32 s38, {a.maxpoll}")
    g("s_cbranch_scc1 L_mlpoll")
    g("s_waitcnt vmcnt(0)")
    g.label("L_mlok")
    def oround(masked):
        for i in range(7):
            if masked:
                g(f"s_mov_b64 exec, s[{SM+2*i}:{SM+2*i+1}]")
            g(f"global_load_dwordx4 {r4(RO+4*i)}, v{vRA[i]}, s[20:21] sc1")
        if masked:
            g("s_mov_b64 exec, -1")
    if not a.amid:
        oround(False)
    lane_combine(True)
    g(f"v_rcp_f32 v{vB}, v{vX+1}")
    g("s_nop 1")
    g(f"v_mul_f32_dpp v{vA}, v{vB}, v{vA} quad_perm:[1,1,3,3] {DPPALL}")
    g(f"v_mul_f32_dpp v{vC}, v{vB}, v{vC} quad_perm:[1,1,3,3] {DPPALL}")
    readfactors(vA, SF)
    g(f"v_readlane_b32 s{STR}, v{vC}, 0")
    g(f"v_readlane_b32 s{STR+1}, v{vC}, 2")
    for i in range(7):
        g(f"s_mov_b64 s[{SM+2*i}:{SM+2*i+1}], -1")
    g(f"v_pk_mul_f32 {r2(vX)}, {r2(vVT)}, s[{STR}:{STR+1}] op_sel:[0,0] op_sel_hi:[1,0]")
    g(f"v_pk_mul_f32 {r2(vX+2)}, {r2(vVT)}, s[{STR}:{STR+1}] op_sel:[0,1] op_sel_hi:[1,1]")
    if a.amid:
        g("s_barrier")
        oround(False)
        if stamp:
            g("s_memrealtime s[62:63]")
    local_o()
    pk("x", ACC, ACC, SF, vX)
    g("s_lshl_b32 s38, s38, 16")
    for _ in range(a.depth - 2):
        oround(False)
    g.label("L_opoll")
    oround(True)
    g(f"s_waitcnt vmcnt({7*(a.depth-1)})")
    for i in range(7):
        pk("x", vY, RO + 4 * i, SF + 2 + 2 * i, ACC if i == 0 else vY)
    g(f"v_pk_add_f32 {r2(vX)}, {r2(vY)}, {r2(vY+2)}")
    g(f"v_cvt_pk_bf16_f32 v{D0}, v{vY}, v{vY+1}")
    g(f"v_cmp_u_f32 vcc, v{vX}, v{vX+1}")
    g(f"v_cvt_pk_bf16_f32 v{D0+1}, v{vY+2}, v{vY+3}")
    g("s_add_u32 s38, s38, 1")
    g("s_cmp_eq_u64 vcc, 0")
    g("s_cbranch_scc1 L_out")
    g.c("a NaN: find the lanes whose record words are still empty")
    g("s_mov_b64 s[30:31], 0")
    for i in range(7):
        g(f"v_max3_u32 v{vA}, v{RO+4*i}, v{RO+4*i+1}, v{RO+4*i+2}")
        g(f"v_max_u32 v{vA}, v{vA}, v{RO+4*i+3}")
        g(f"v_cmp_eq_u32 s[{SM+2*i}:{SM+2*i+1}], -1, v{vA}")
    g("s_and_b32 s3, s38, 0xffff")
    g(f"s_cmp_ge_u32 s3, {a.maxpoll}")
    g("s_cbranch_scc1 L_out")
    for i in range(7):
        g(f"s_or_b64 s[30:31], s[30:31], s[{SM+2*i}:{SM+2*i+1}]")
    g("s_cbranch_scc1 L_opoll")
    g.c("all words present (they may have landed after the trial sum): redo it once")
    for i in range(7):
        pk("x", vY, RO + 4 * i, SF + 2 + 2 * i, ACC if i == 0 else vY)
    g(f"v_cvt_pk_bf16_f32 v{D0}, v{vY}, v{vY+1}")
    g(f"v_cvt_pk_bf16_f32 v{D0+1}, v{vY+2}, v{vY+3}")
    g.label("L_out")
    of = (" " + a.outflags) if a.outflags else ""
    g(f"global_store_dword v{vOut}, v{D0}, s[16:17]{of}")
    g(f"global_store_dword v{vOut}, v{D0+1}, s[16:17] offset:256{of}")
    put_stamps(True)
    g.label("L_end")
    g("s_endpgm")

    assert nvgpr <= 168
    lds = max(LDS_T0 + 16, a.lds)
    nv = nvgpr
    out = HEADER
    out += f"; @launch grid=(256,1,1) block=({(NW+1)*64},1,1) lds={lds}\n"
    out += f""".amdgcn_target "amdgcn-amd-amdhsa--gfx950"
.text
.globl {NAME}_kernel
.p2align 8
.type {NAME}_kernel,@function
{NAME}_kernel:
"""
    out += g.text()
    out += f""".section .rodata,"a"
.p2align 6
.amdhsa_kernel {NAME}_kernel
  .amdhsa_next_free_vgpr {nv}
  .amdhsa_next_free_sgpr 100
  .amdhsa_accum_offset {(nv + 3) // 4 * 4}
  .amdhsa_group_segment_fixed_size 0
  .amdhsa_kernarg_size 72
  .amdhsa_user_sgpr_count 2
  .amdhsa_user_sgpr_kernarg_segment_ptr 1
  .amdhsa_system_sgpr_workgroup_id_x 1
.end_amdhsa_kernel
"""
    return out


if __name__ == "__main__":
    ap = argparse.ArgumentParser()
    ap.add_argument("-o", default=None)
    ap.add_argument("--ldflags", default="nt")
    ap.add_argument("--outflags", default="")
    ap.add_argument("--xcdmap", type=int, default=1)
    ap.add_argument("--win", type=int, default=5)
    ap.add_argument("--pat", default="lljjjwwwttsss")
    ap.add_argument("--rot", default="pair:0")
    ap.add_argument("--pace", type=int, default=110)
    ap.add_argument("--poff", type=int, default=150)
    ap.add_argument("--pstep", type=int, default=4)
    ap.add_argument("--ws", type=int, default=3)
    ap.add_argument("--ws2", type=int, default=2)
    ap.add_argument("--far", type=int, default=0)
    ap.add_argument("--lev", default="")
    ap.add_argument("--first", type=int, default=1000)
    ap.add_argument("--sync", type=int, default=1)
    ap.add_argument("--syncat", default="4")
    ap.add_argument("--amid", type=int, default=1)
    ap.add_argument("--trace", type=int, default=0)
    ap.add_argument("--l2fast", type=int, default=0)
    ap.add_argument("--resent", type=int, default=0)
    ap.add_argument("--otouch", type=int, default=0)
    ap.add_argument("--l2flag", default="")
    ap.add_argument("--nosent", type=int, default=0)
    ap.add_argument("--only", type=lambda x: int(x, 0), default=255)
    ap.add_argument("--pacev", type=int, default=0)
    ap.add_argument("--p8", type=int, default=0)
    ap.add_argument("--p8v", type=int, default=0)
    ap.add_argument("--syncmax", type=int, default=300)
    ap.add_argument("--depth", type=int, default=2)
    ap.add_argument("--qfirst", type=int, default=1)
    ap.add_argument("--maxpoll", type=int, default=20000)
    ap.add_argument("--lds", type=int, default=90000)
    ap.add_argument("--stamp", type=int, default=0)
    a = ap.parse_args()
    a.syncat = [int(x) for x in a.syncat.split(",")]
    a.pacev = a.pacev or a.pace
    if a.p8:
        a.pace = 1
    else:
        a.p8, a.p8v = a.pace * 8 // a.pstep, a.pacev * 8 // a.pstep
    a.p8v = a.p8v or a.p8
    if a.lev:
        a.lev = [tuple(int(y) for y in x.replace("m", "-").split(":")) for x in a.lev.split(",")]
    else:
        a.lev = [(0, a.ws)] + ([(-a.far, a.ws2)] if a.far else [])
    if a.rot == "none":
        a.rot = ""
    s = gen(a)
    if a.o:
        open(a.o, "w").write(s)
    else:
        sys.stdout.write(s)
```

```python
import sys, argparse, struct

NAME = "standalone__tree_speculative_verify_tree_attention_over_candidate_token_tree__decode"

HEADER = """; Kernarg layout for this problem (72 bytes, ptrs only, base s[0:1]):
"""

def f32bits(x):
    return struct.unpack("<I", struct.pack("<f", x))[0]

C1 = (128 ** -0.5) * 1.4426950408889634
MASKC = -1.0e9 * 1.4426950408889634
DPPALL = "row_mask:0xf bank_mask:0xf"
M32 = 0xffffffff


class G:
    def __init__(self):
        self.l = []
    def __call__(self, s):
        self.l.append("    " + s)
    def label(self, s):
        self.l.append(s + ":")
    def c(self, s):
        self.l.append("    ; " + s)
    def text(self):
        return "\n".join(self.l) + "\n"


def r4(b):
    return f"v[{b}:{b+3}]"
def r2(b):
    return f"v[{b}:{b+1}]"


def gen(a):
    NW = 8
    W = a.win
    ldf = (" " + a.ldflags) if a.ldflags else ""
    stamp = a.stamp
    g = G()
    vLane, vWave, vA, vB, vC = 1, 2, 3, 4, 5
    vK, vV = 6, 7
    Q = 8
    ACC = 12
    D0, D1 = 16, 20
    T = 72
    vM, vL, vPM = 26, 27, 28
    vAl, vOA, vE = 29, 30, 31
    AS = [32, 36]
    KR, VR = 40, 72
    vZ, vT = 104, 105
    ST = 106
    nvgpr = ST + (14 if stamp else 0)
    vMt, vVT, vRec, vMLA, vOut, vTkA = 6, 24, 7, 28, 29, 30
    vX = 32
    vY = 36
    LO = KR
    RO = VR
    vRA = [100, 101, 102, 103, 104, 105, 31]
    LDS_O, LDS_ML, LDS_T0 = 0, 8192, 8192 + 256
    SG, SF, STR = 64, 80, 96
    SM = 40

    pat = a.pat
    assert len(pat) == 13 and sorted(pat) == sorted("lljjjwwwttsss"), pat
    pos = {c: [8 + i for i, x in enumerate(pat) if x == c] for c in "ljwts"}
    def spread(v, c):
        return sum(((v >> i) & 1) << b for i, b in enumerate(pos[c]))
    joff = [spread(j, "j") for j in range(8)]
    jb = []
    b = 4096 + joff[0]
    for j in range(8):
        if not (-4096 <= joff[j] - b <= 4095):
            b = joff[j] + 4096
        jb.append(b)
    ta = spread(1, "t")
    tB = spread(2, "t")
    c0 = (jb[0] - jb[7]) & M32
    d_even = (ta + c0) & M32
    d_odd = (tB - ta + c0) & M32

    g("s_cmp_ge_u32 s2, 256")
    g("s_cbranch_scc1 L_end")
    if a.only != 255:
        g("s_and_b32 s3, s2, 7")
        g(f"s_lshr_b32 s3, {a.only}, s3")
        g("s_and_b32 s3, s3, 1")
        g("s_cbranch_scc0 L_end")
    g("s_memrealtime s[58:59]")
    g("s_load_dwordx16 s[4:19], s[0:1], 0")
    g("s_load_dwordx2 s[20:21], s[0:1], 64")
    g(f"v_and_b32 v{vLane}, 63, v0")
    g(f"v_lshrrev_b32 v{vWave}, 6, v0")
    g.c("s23 = (batch, kv head) pair, s37 = key slot")
    if a.xcdmap == 1:
        g("s_and_b32 s23, s2, 7")
        g("s_lshl_b32 s23, s23, 2")
        g("s_bfe_u32 s3, s2, 0x20003")
        g("s_add_u32 s23, s23, s3")
        g("s_lshr_b32 s37, s2, 5")
    else:
        g("s_lshr_b32 s23, s2, 3")
        g("s_and_b32 s37, s2, 7")
    g(f"v_readfirstlane_b32 s22, v{vWave}")
    g.c("Q offset: pair*512 + ((l>>1)&1)*256 + (l>>4)*64 + ((l>>2)&3)*16")
    g(f"v_bfe_u32 v{vB}, v{vLane}, 2, 2")
    g(f"v_lshrrev_b32 v{vC}, 4, v{vLane}")
    g("s_lshl_b32 s24, s23, 9")
    g(f"v_lshlrev_b32 v{vE}, 6, v{vC}")
    g(f"v_lshl_add_u32 v{vE}, v{vB}, 4, v{vE}")
    g(f"v_bfe_u32 v{vA}, v{vLane}, 1, 1")
    g(f"v_lshl_add_u32 v{vE}, v{vA}, 8, v{vE}")
    g(f"v_add_u32 v{vE}, s24, v{vE}")
    g(f"s_mov_b32 s25, 0x{f32bits(C1):08x}")
    g("s_cmp_eq_u32 s22, 8")
    g("s_cbranch_scc1 L_helper")

    g("s_lshl_b32 s3, s23, 21")
    g(f"s_add_u32 s3, s3, {jb[0]}")
    g("s_mov_b32 s40, 3")
    def sspread(src, c):
        p = pos[c]
        if p == list(range(p[0], p[0] + len(p))):
            g(f"s_lshl_b32 s43, {src}, {p[0]}")
            g("s_add_u32 s3, s3, s43")
        else:
            for i, b in enumerate(p):
                g(f"s_bfe_u32 s43, {src}, 0x{(1<<16)|i:x}")
                g(f"s_lshl_b32 s43, s43, {b}")
                g("s_add_u32 s3, s3, s43")
    sspread("s37", "s")
    sspread("s22", "w")
    if a.rot:
        src, sh = a.rot.split(":")
        src = {"wg": "s2", "wave": "s22", "slot": "s37", "pair": "s23"}[src]
        g(f"s_bfe_u32 s44, {src}, 0x{(2 << 16) | int(sh):x}")
        sspread("s44", "t")
    lp = pos["l"]
    if lp == [8, 9]:
        g(f"v_lshl_add_u32 v{vV}, v{vLane}, 4, s3")
        g(f"v_lshl_add_u32 v{vA}, v{vB}, 8, s3")
    else:
        g(f"v_and_b32 v{vV}, 15, v{vLane}")
        g(f"v_lshl_add_u32 v{vV}, v{vV}, 4, s3")
        g(f"v_bfe_u32 v{vA}, v{vLane}, 4, 1")
        g(f"v_lshl_add_u32 v{vV}, v{vA}, {lp[0]}, v{vV}")
        g(f"v_bfe_u32 v{vA}, v{vLane}, 5, 1")
        g(f"v_lshl_add_u32 v{vV}, v{vA}, {lp[1]}, v{vV}")
        g(f"v_bfe_u32 v{vA}, v{vLane}, 2, 1")
        g(f"v_lshl_add_u32 v{vK}, v{vA}, {lp[0]}, s3")
        g(f"v_bfe_u32 v{vA}, v{vLane}, 3, 1")
        g(f"v_lshl_add_u32 v{vA}, v{vA}, {lp[1]}, v{vK}")
    g(f"v_lshl_add_u32 v{vA}, v{vC}, 6, v{vA}")
    g(f"v_and_b32 v{vK}, 3, v{vLane}")
    g(f"v_lshl_add_u32 v{vK}, v{vK}, 4, v{vA}")
    if a.rot:
        g("s_and_b32 s43, s44, 1")
        g(f"s_mov_b32 s46, 0x{ta:x}")
        g(f"s_cselect_b32 s46, 0x{(-ta) & M32:x}, s46")
        g("s_and_b32 s43, s44, 2")
        g(f"s_mov_b32 s55, 0x{tB:x}")
        g(f"s_cselect_b32 s55, 0x{(-tB) & M32:x}, s55")
        g("s_sub_u32 s55, s55, s46")
        if c0:
            g(f"s_add_u32 s55, s55, 0x{c0:x}")
            g(f"s_add_u32 s46, s46, 0x{c0:x}")
        g("s_xor_b32 s55, s55, s46")
        g("s_mov_b32 s47, s46")
    elif d_even != d_odd:
        g(f"s_mov_b32 s46, 0x{d_even:x}")
        g(f"s_mov_b32 s47, 0x{d_even:x}")
    g("s_waitcnt lgkmcnt(0)")
    if a.trace == 2:
        g("s_memrealtime s[50:51]")

    def issue1(isv, j):
        ar, base = (vV, "s[8:9]") if isv else (vK, "s[6:7]")
        g(f"global_load_dwordx4 {r4(KR+4*j)}, v{ar}, {base} offset:{joff[j]-jb[j]}{ldf}")
        if j < 7:
            if jb[j + 1] != jb[j]:
                g(f"v_add_u32 v{ar}, 0x{(jb[j+1] - jb[j]) & M32:x}, v{ar}")
        elif d_even == d_odd and not a.rot:
            g(f"v_add_u32 v{ar}, 0x{d_even:x}, v{ar}")
        else:
            sd = "s47" if isv else "s46"
            g(f"v_add_u32 v{ar}, {sd}, v{ar}")
            g(f"s_xor_b32 {sd}, {sd}, " + ("s55" if a.rot else f"0x{d_even ^ d_odd:x}"))

    assert W <= 8
    if a.qfirst:
        g(f"global_load_dwordx4 {r4(Q)}, v{vE}, s[4:5]")
        for i in range(W):
            issue1(0, i)
    else:
        issue1(0, 0)
        g(f"global_load_dwordx4 {r4(Q)}, v{vE}, s[4:5]")
        for i in range(1, W):
            issue1(0, i)
    g("s_mov_b32 s54, s58")
    g("s_mov_b32 s53, s58")
    NR = 64 - W
    if a.interp:
        slope0 = round(a.pstep * 256 * (a.interp - a.poff) / NR)
        g(f"s_mov_b32 s57, {a.poff * 256}")
        g(f"s_mov_b32 s48, {slope0}")
    else:
        g(f"s_mov_b32 s57, {a.poff}")
    g(f"s_add_u32 s58, s58, {a.poff + a.first}")
    g(f"v_and_b32 v{vA}, 1, v{vLane}")
    g(f"v_lshlrev_b32 v{vA}, 4, v{vA}")
    g(f"v_mov_b32 v{vB}, 0xffff")
    g(f"v_lshlrev_b32 v{vPM}, v{vA}, v{vB}")
    for s in AS:
        for r in range(4):
            g(f"v_mov_b32 v{s+r}, 0")
    for r in range(4):
        g(f"v_mov_b32 v{ACC+r}, 0")
    g(f"v_lshlrev_b32 v{vOA}, 4, v0")
    g(f"v_and_b32 v{vE}, 3, v{vLane}")
    g(f"v_lshlrev_b32 v{vE}, 3, v{vE}")
    g(f"v_lshl_add_u32 v{vE}, v{vWave}, 5, v{vE}")
    g(f"v_mov_b32 v{vZ}, 0")
    if a.trace:
        g(f"v_mov_b32 v{ST}, s54")
        g("s_mov_b32 m0, 1")
    if a.trace == 2:
        g("s_waitcnt lgkmcnt(0)")
        g(f"v_writelane_b32 v{ST}, s50, 62")
        g("s_memrealtime s[50:51]")
        g("s_waitcnt lgkmcnt(0)")
        g(f"v_writelane_b32 v{ST}, s50, 63")
        g(f"s_waitcnt vmcnt({W})")
        g("s_memrealtime s[50:51]")
        g("s_waitcnt lgkmcnt(0)")
        g(f"v_writelane_b32 v{ST}, s50, 61")

    def xreduce(op, x, y, swap32=True):
        g("s_nop 1")
        g(f"{op}_dpp v{y}, v{x}, v{x} row_ror:4 {DPPALL}")
        g("s_nop 1")
        g(f"{op}_dpp v{x}, v{y}, v{y} row_ror:8 {DPPALL}")
        g(f"v_mov_b32 v{y}, v{x}")
        g("s_nop 1")
        g(f"v_permlane16_swap_b32 v{x}, v{y}")
        g(f"{op} v{x}, v{x}, v{y}")
        if swap32:
            g(f"v_mov_b32 v{y}, v{x}")
            g("s_nop 1")
            g(f"v_permlane32_swap_b32 v{x}, v{y}")
            g(f"{op} v{x}, v{x}, v{y}")

    def ror(n):
        n %= 16
        return "quad_perm:[0,1,2,3]" if n == 0 else f"row_ror:{n}"

    cnt = [0]
    U = 256 if a.interp else 1
    def refill(isv, i, last):
        if isv and last and i + W >= 8:
            return 0
        ps = a.pstep
        if a.pace:
            if i % ps == 0:
                g("s_waitcnt lgkmcnt(0)")
                if a.trace:
                    g(f"v_writelane_b32 v{ST}, s58, m0")
                    g("s_add_u32 m0, m0, 1")
                if a.sync and i in a.syncat and not last and not isv:
                    g(f"v_readfirstlane_b32 s52, v{vT}")
                    g("s_sub_u32 s56, s54, s52")
                    g(f"s_cmp_lt_u32 s56, {a.syncmax}")
                    if a.interp:
                        g("s_cselect_b32 s56, s56, 0")
                        g(f"s_mul_i32 s52, s56, {round(ps * 256 * 16 * a.beta / NR)}")
                        g("s_lshr_b32 s52, s52, 4")
                        g(f"s_sub_u32 s48, {slope0}, s52")
                        if a.gamma:
                            g(f"s_mul_i32 s52, s56, {round(a.gamma * 64)}")
                            g("s_lshr_b32 s52, s52, 6")
                            g("s_sub_u32 s53, s54, s52")
                    else:
                        g("s_cselect_b32 s53, s52, s53")
                g("s_sub_u32 s56, s58, s53")
                if a.interp:
                    g("s_lshl_b32 s56, s56, 8")
                g("s_sub_u32 s56, s56, s57")
                g(f"s_cmp_lt_i32 s56, {a.lev[0][0] * U}")
                g("s_cselect_b64 vcc, -1, 0")
                p8 = a.p8v if isv else a.p8
                if a.interp:
                    g("s_add_u32 s57, s57, s48")
                else:
                    g(f"s_add_u32 s57, s57, {(i + ps) * p8 // 8 - i * p8 // 8}")
            cnt[0] += 1
            if isv and not last and i < a.midx:
                g("s_cmp_eq_u32 s40, 3")
                g(f"s_cbranch_scc1 L_skx{cnt[0]}")
            g(f"s_cbranch_vccz L_sk{cnt[0]}")
            g(f"s_waitcnt vmcnt({a.lev[0][1]-1})")
            for th, cap in a.lev[1:]:
                g(f"s_cmp_lt_i32 s56, {th * U}")
                g(f"s_cbranch_scc0 L_sk{cnt[0]}")
                g(f"s_waitcnt vmcnt({cap-1})")
            g.label(f"L_sk{cnt[0]}")
        issue1(isv or (last and i + W >= 8), (i + W) % 8)
        if isv and not last and i < a.midx:
            g.label(f"L_skx{cnt[0]}")
        if a.pace and i % ps == ps - 1:
            g("s_memrealtime s[58:59]")
            if a.sync and (i + 1) in a.syncat and not last and not isv:
                g(f"ds_read_b32 v{vT}, v{vZ} offset:{LDS_T0}")
        return 1

    def shift():
        for r in range(6):
            g(f"v_mov_b32 v{T+r}, v{T+r+2}")

    def qk(last):
        T0, T1 = T + 6, T + 7
        for j in range(8):
            D = D0 if j % 2 == 0 else D1
            g(f"s_waitcnt vmcnt({W-1})")
            g(f"v_mfma_f32_16x16x32_bf16 {r4(D)}, {r4(KR+4*j)}, {r4(Q)}, 0")
            n = refill(0, j, last)
            if j == 0:
                shift()
            if j >= 1:
                jp = j - 1
                Dp = D0 if jp % 2 == 0 else D1
                q = jp & 3
                Tx = T0 if jp < 4 else T1
                x, y, z, w_ = [Dp + ((q + i) % 4) for i in range(4)]
                g(f"s_nop {6-n}")
                g(f"v_add_f32_dpp v{vA}, v{y}, v{x} row_ror:12 {DPPALL}")
                g(f"v_add_f32_dpp v{vB}, v{w_}, v{z} row_ror:12 {DPPALL}")
                g("s_nop 1")
                g(f"v_add_f32_dpp v{Tx}, v{vB}, v{vA} row_ror:8 row_mask:0xf bank_mask:0x{1<<q:x}")
        Dp = D1
        q = 3
        x, y, z, w_ = [Dp + ((q + i) % 4) for i in range(4)]
        g(f"v_add_f32_dpp v{vA}, v{y}, v{x} row_ror:12 {DPPALL}")
        g(f"v_add_f32_dpp v{vB}, v{w_}, v{z} row_ror:12 {DPPALL}")
        g("s_nop 1")
        g(f"v_add_f32_dpp v{T1}, v{vB}, v{vA} row_ror:8 row_mask:0xf bank_mask:0x{1<<q:x}")

    def softmax():
        g(f"v_max3_f32 v{vA}, v{T}, v{T+1}, v{T+2}")
        g(f"v_max3_f32 v{vB}, v{T+3}, v{T+4}, v{T+5}")
        g(f"v_max3_f32 v{vA}, v{vA}, v{T+6}, v{T+7}")
        g(f"v_max_f32 v{vA}, v{vA}, v{vB}")
        xreduce("v_max_f32", vA, vB)
        g(f"v_mul_f32 v{vM}, s25, v{vA}")
        for r in range(8):
            g(f"v_fma_f32 v{T+r}, v{T+r}, s25, -v{vM}")
        for r in range(8):
            g(f"v_exp_f32 v{T+r}, v{T+r}")
        for r in range(8):
            g(f"v_cvt_pk_bf16_f32 v{T+r}, v{T+r}, v{T+r}")
        for r in range(8):
            g(f"v_and_b32 v{T+r}, v{T+r}, v{vPM}")
        g(f"v_add_f32 v{vL}, v{T}, v{T+1}")
        g(f"v_add_f32 v{vA}, v{T+2}, v{T+3}")
        g(f"v_add_f32 v{vL}, v{vL}, v{T+4}")
        g(f"v_add_f32 v{vA}, v{vA}, v{T+5}")
        g(f"v_add_f32 v{vL}, v{vL}, v{T+6}")
        g(f"v_add_f32 v{vA}, v{vA}, v{T+7}")
        g(f"v_add_f32 v{vL}, v{vL}, v{vA}")
        xreduce("v_add_f32", vL, vB)
        g(f"ds_write_b64 v{vE}, {r2(vM)} offset:{LDS_ML}")
        if a.amid:
            g("s_waitcnt lgkmcnt(0)")
            g("s_barrier")

    def pv(last):
        jA = max(7 - W, -1)
        if last and jA < 0:
            g("s_waitcnt lgkmcnt(0)")
            g("s_barrier")
        for j in range(8):
            A = AS[j % 2]
            Tx = T if j < 4 else T + 1
            q = j & 3
            for r in range(4):
                g(f"v_mov_b32_dpp v{A+r}, v{Tx} {ror(4*(r-q))} row_mask:0xf bank_mask:0x{1<<r:x}")
            g(f"s_waitcnt vmcnt({min(W - 1, 7 - j) if last else W - 1})")
            g("s_nop 0")
            g(f"v_mfma_f32_16x16x32_bf16 {r4(ACC)}, {r4(A)}, {r4(KR+4*j)}, {r4(ACC)}")
            refill(1, j, last)
            if last and j == jA:
                g("s_waitcnt lgkmcnt(0)")
                g("s_barrier")
        if not last:
            shift()

    if not a.qfirst:
        g(f"s_waitcnt vmcnt({W-1})")
    g.label("L_loopk")
    qk(False)
    g("s_sub_u32 s40, s40, 1")
    g("s_cmp_lg_u32 s40, 0")
    g("s_cbranch_scc1 L_loopk")
    qk(True)
    assert W + a.midx <= 8
    for k in range(a.midx):
        issue1(1, W + k)
    softmax()
    g("s_mov_b32 s40, 3")
    g.label("L_loopv")
    pv(False)
    g("s_sub_u32 s40, s40, 1")
    g("s_cmp_lg_u32 s40, 0")
    g("s_cbranch_scc1 L_loopv")
    pv(True)
    g("s_nop 7")
    g(f"ds_write_b128 v{vOA}, {r4(ACC)} offset:{LDS_O}")
    if a.trace:
        g("s_memrealtime s[58:59]")
    g("s_waitcnt lgkmcnt(0)")
    g("s_barrier")
    if a.trace:
        g(f"v_writelane_b32 v{ST}, s58, m0")
        g("s_lshl_b32 s3, s2, 11")
        g("s_add_u32 s3, s3, 0x200000")
        g(f"v_lshl_add_u32 v{ST+1}, v0, 2, s3")
        g(f"global_store_dword v{ST+1}, v{ST}, s[20:21]")
    g("s_endpgm")

    g.label("L_helper")
    g.c("addresses")
    g("s_lshl_b32 s26, s23, 8")
    g(f"v_and_b32 v{vA}, 3, v{vLane}")
    g(f"v_lshlrev_b32 v{vB}, 6, v{vC}")
    g(f"v_lshl_add_u32 v{vB}, v{vA}, 4, v{vB}")
    g(f"v_add_u32 v{vB}, s26, v{vB}")
    g(f"v_and_b32 v{vX}, 15, v{vLane}")
    g(f"v_lshlrev_b32 v{vX}, 4, v{vX}")
    g(f"v_lshl_add_u32 v{vOut}, v{vC}, 2, v{vX}")
    g(f"v_add_u32 v{vC}, s26, v{vOut}")
    g(f"v_add_u32 v{vOut}, s24, v{vOut}")
    g("s_lshl_b32 s32, s23, 14")
    g("s_lshl_b32 s33, s37, 10")
    g("s_add_u32 s33, s33, s32")
    g(f"v_lshl_add_u32 v{vRec}, v{vLane}, 4, s33")
    g(f"v_bfe_u32 v{vX}, v{vLane}, 2, 3")
    g(f"v_xor_b32 v{vX}, s37, v{vX}")
    g(f"v_lshlrev_b32 v{vX}, 5, v{vX}")
    g(f"v_lshl_add_u32 v{vX}, v{vA}, 3, v{vX}")
    g("s_add_u32 s33, s32, 8192")
    g(f"v_add_u32 v{vMLA}, s33, v{vX}")
    g("s_lshl_b32 s34, s23, 3")
    g(f"v_mov_b32 v{vTkA}, s34")
    g("s_and_b32 s35, s2, 0xf8")
    g(f"v_mov_b32 v{vY+2}, s35")
    g(f"v_mov_b32 v{vY+1}, 0")
    for r in range(4):
        g(f"v_mov_b32 v{vX+r}, -1")
    g("s_waitcnt lgkmcnt(0)")
    if stamp:
        g("s_mov_b64 s[60:61], s[58:59]")
    if a.sync:
        g("s_or_b32 s58, s58, 1")
        g(f"v_mov_b32 v{vY}, s58")
        g("s_mov_b64 exec, 1")
        g(f"global_atomic_cmpswap v{vY+3}, v{vY+2}, {r2(vY)}, s[18:19] offset:4 sc0")
        g("s_mov_b64 exec, -1")
    g(f"global_load_dwordx4 {r4(Q)}, v{vE}, s[4:5]")
    g(f"global_load_dwordx4 {r4(D1)}, v{vB}, s[10:11]")
    g(f"global_load_dword v{vVT+1}, v{vC}, s[12:13]")
    g("s_load_dword s27, s[14:15], 0")
    g.c("mark own record empty")
    if a.nosent:
        g(f"global_load_dword v{vY+1}, v{vC}, s[12:13]")
        g(f"global_load_dword v{vY+1}, v{vC}, s[12:13]")
    else:
        g(f"global_store_dwordx4 v{vRec}, {r4(vX)}, s[20:21] sc1")
        g("s_mov_b64 exec, 15")
        g(f"global_store_dwordx2 v{vMLA}, {r2(vX)}, s[20:21] sc1")
        g("s_mov_b64 exec, -1")
    for i in range(1, 8):
        g(f"v_xor_b32 v{vRA[i-1]}, {i*1024}, v{vRec}")
    if a.sync:
        g("s_waitcnt vmcnt(5)")
        g(f"v_mov_b32 v{vY+1}, 0")
        g("s_mov_b64 exec, 1")
        g(f"ds_write_b32 v{vY+1}, v{vY+3} offset:{LDS_T0}")
        g("s_mov_b64 exec, -1")
    g.c("tree token score")
    g("s_waitcnt vmcnt(2) lgkmcnt(0)")
    g(f"v_mfma_f32_16x16x32_bf16 {r4(D0)}, {r4(D1)}, {r4(Q)}, 0")
    g(f"v_lshlrev_b32 v{vVT}, 16, v{vVT+1}")
    g(f"v_and_b32 v{vVT+1}, 0xffff0000, v{vVT+1}")
    g("s_lshr_b32 s33, s23, 4")
    g("s_lshl_b32 s33, s33, 4")
    g("s_lshr_b32 s27, s27, s33")
    g("s_lshl_b32 s27, s27, 16")
    g("s_nop 3")
    g(f"v_add_f32_dpp v{vA}, v{D0+1}, v{D0} row_ror:12 {DPPALL}")
    g(f"v_add_f32_dpp v{vB}, v{D0+3}, v{D0+2} row_ror:12 {DPPALL}")
    g("s_nop 1")
    g(f"v_add_f32_dpp v{vA}, v{vB}, v{vA} row_ror:8 {DPPALL}")
    g("s_nop 1")
    g(f"v_mov_b32_dpp v{vMt}, v{vA} quad_perm:[0,1,2,3] row_mask:0xf bank_mask:0x1")
    g("s_nop 1")
    g(f"v_mov_b32_dpp v{vMt}, v{vA} row_ror:4 row_mask:0xf bank_mask:0x2")
    g("s_nop 1")
    g(f"v_mov_b32_dpp v{vMt}, v{vA} row_ror:8 row_mask:0xf bank_mask:0x4")
    g("s_nop 1")
    g(f"v_mov_b32_dpp v{vMt}, v{vA} row_ror:12 row_mask:0xf bank_mask:0x8")
    g(f"v_sub_f32 v{vB}, 1.0, s27")
    g(f"v_mul_f32 v{vB}, 0x{f32bits(MASKC):08x}, v{vB}")
    g(f"v_fma_f32 v{vMt}, v{vMt}, s25, v{vB}")
    g.c("election: the last of the 8 workgroups to have emptied its record collects")
    if a.l2fast:
        g.c("one arrival counter nibble per XCD")
        g("s_getreg_b32 s39, hwreg(HW_REG_XCC_ID, 0, 3)")
        g("s_lshl_b32 s39, s39, 2")
        g("s_lshl_b32 s39, 1, s39")
        g(f"v_mov_b32 v{vY}, s39")
        g("s_lshl_b32 s39, s39, 3")
    else:
        g(f"v_mov_b32 v{vY}, 1")
    g("s_waitcnt vmcnt(0)")
    g("s_mov_b64 exec, 1")
    g(f"global_atomic_add v{vY}, v{vTkA}, v{vY}, s[18:19] sc0")
    g("s_mov_b64 exec, -1")
    g(f"v_and_b32 v{vA}, 31, v{vLane}")
    g(f"v_lshlrev_b32 v{vTkA}, 3, v{vA}")
    g.l.pop()
    g(f"v_lshlrev_b32 v{Q}, 3, v{vA}")
    g(f"v_lshlrev_b32 v{Q+1}, 4, v{vLane}")
    g("s_waitcnt vmcnt(0)")
    g(f"v_readfirstlane_b32 s36, v{vY}")
    if a.l2fast:
        assert a.amid
        g("s_lshr_b32 s35, s36, 4")
        g("s_and_b32 s35, s35, 0x0f0f0f0f")
        g("s_and_b32 s36, s36, 0x0f0f0f0f")
        g("s_add_u32 s36, s36, s35")
        g("s_mul_i32 s36, s36, 0x01010101")
        g("s_lshr_b32 s36, s36, 24")
    g("s_barrier")
    if stamp:
        g("s_memrealtime s[28:29]" if a.amid else "s_memrealtime s[62:63]")
    g(f"ds_read_b64 {r2(vM)}, v{Q} offset:{LDS_ML}")
    g("s_waitcnt lgkmcnt(0)")

    def lane_combine(extra):
        g(f"v_mov_b32 v{vX}, v{vM}")
        xreduce("v_max_f32", vX, vB, swap32=False)
        if extra:
            g(f"v_max_f32 v{vX}, v{vX}, v{vMt}")
            g(f"v_sub_f32 v{vC}, v{vMt}, v{vX}")
        g(f"v_sub_f32 v{vA}, v{vM}, v{vX}")
        if extra:
            g(f"v_exp_f32 v{vC}, v{vC}")
        g(f"v_exp_f32 v{vA}, v{vA}")
        g("s_nop 0")
        g(f"v_mul_f32 v{vX+1}, v{vA}, v{vL}")
        xreduce("v_add_f32", vX + 1, vB, swap32=False)
        if extra:
            g(f"v_add_f32 v{vX+1}, v{vX+1}, v{vC}")

    def readfactors(src, sbase):
        for i in range(8):
            g(f"v_readlane_b32 s{sbase+2*i}, v{src}, {4*i}")
            g(f"v_readlane_b32 s{sbase+2*i+1}, v{src}, {4*i+2}")

    def pk(op, dst, src, sp, acc=None):
        if acc is None:
            g(f"v_pk_mul_f32 {r2(dst)}, {r2(src)}, s[{sp}:{sp+1}] op_sel:[0,0] op_sel_hi:[1,0]")
            g(f"v_pk_mul_f32 {r2(dst+2)}, {r2(src+2)}, s[{sp}:{sp+1}] op_sel:[0,1] op_sel_hi:[1,1]")
        else:
            g(f"v_pk_fma_f32 {r2(dst)}, {r2(src)}, s[{sp}:{sp+1}], {r2(acc)} op_sel:[0,0,0] op_sel_hi:[1,0,1]")
            g(f"v_pk_fma_f32 {r2(dst+2)}, {r2(src+2)}, s[{sp}:{sp+1}], {r2(acc+2)} op_sel:[0,1,0] op_sel_hi:[1,1,1]")

    def local_o():
        g("s_barrier")
        if stamp:
            g("s_memrealtime s[98:99]")
        for w in range(NW):
            g(f"ds_read_b128 {r4(LO+4*w)}, v{Q+1} offset:{LDS_O+1024*w}")
        if stamp:
            g("s_waitcnt lgkmcnt(0)")
        for w in range(NW):
            g(f"s_waitcnt lgkmcnt({NW-1-w})")
            pk("x", ACC, LO + 4 * w, SG + 2 * w, None if w == 0 else ACC)

    def put_stamps(final):
        if not stamp:
            return
        g("s_waitcnt vmcnt(0)")
        g("s_memrealtime s[56:57]")
        g("s_lshl_b32 s3, s2, 6")
        g("s_add_u32 s3, s3, 0x100000")
        g(f"v_mov_b32 v{ST}, s3")
        g("s_getreg_b32 s54, hwreg(HW_REG_XCC_ID)")
        g("s_getreg_b32 s55, hwreg(HW_REG_HW_ID)")
        g("s_waitcnt lgkmcnt(0)")
        regs = [60, 61, 62, 63, 98, 99, 56, 57] + ([56, 57] if final else [None, None]) + [54, 55]
        for i, sr in enumerate(regs):
            g(f"v_mov_b32 v{ST+2+i}, " + ("0" if sr is None else f"s{sr}"))
        g(f"global_store_dwordx4 v{ST}, {r4(ST+2)}, s[20:21]")
        g(f"global_store_dwordx4 v{ST}, {r4(ST+6)}, s[20:21] offset:16")
        g(f"global_store_dwordx4 v{ST}, {r4(ST+10)}, s[20:21] offset:32")
        g(f"v_mov_b32 v{ST+1}, " + ("s38" if final else "0"))
        g(f"global_store_dword v{ST}, v{ST+1}, s[20:21] offset:48")
        g("s_nop 1")
        g(f"v_mov_b32 v{ST+2}, s28")
        g(f"v_mov_b32 v{ST+3}, s29")
        g(f"global_store_dwordx2 v{ST}, {r2(ST+2)}, s[20:21] offset:56")

    lane_combine(False)
    g("s_cmp_eq_u32 s36, 7")
    g("s_cbranch_scc1 L_collect")
    g(f"v_min_u32 v{vX}, -2, v{vX}")
    g(f"v_min_u32 v{vX+1}, -2, v{vX+1}")
    g("s_mov_b64 exec, 15")
    g(f"global_store_dwordx2 v{vMLA}, {r2(vX)}, s[20:21] sc1")
    g("s_mov_b64 exec, -1")
    if a.l2fast:
        g(f"global_load_dword v{vY}, v{vTkA}, s[18:19] sc1")
    readfactors(vA, SG)
    if a.l2fast:
        g("s_waitcnt vmcnt(0)")
        g(f"v_readfirstlane_b32 s35, v{vY}")
    def resent():
        g("s_cmp_eq_u32 s35, s39")
        g("s_cbranch_scc0 L_far0")
        g(f"global_store_dwordx4 v{vRec}, {r4(vX)}, s[20:21]")
        g.label("L_far0")
    if a.resent:
        for r in range(4):
            g(f"v_mov_b32 v{vX+r}, -1")
    if a.resent == 2:
        resent()
    if a.amid:
        g("s_barrier")
        if stamp:
            g("s_memrealtime s[62:63]")
    if a.resent == 1:
        resent()
    local_o()
    for r in range(4):
        g(f"v_min_u32 v{ACC+r}, -2, v{ACC+r}")
    if a.l2fast:
        g.c("all 8 workgroups of this pair run on this XCD: hand over through its L2")
        g("s_cmp_eq_u32 s35, s39")
        g("s_cbranch_scc0 L_far")
        g(f"global_store_dwordx4 v{vRec}, {r4(ACC)}, s[20:21]" + (" " + a.l2flag if a.l2flag else ""))
        put_stamps(False)
        g("s_endpgm")
        g.label("L_far")
    g(f"global_store_dwordx4 v{vRec}, {r4(ACC)}, s[20:21] sc1")
    put_stamps(False)
    g("s_endpgm")
    g.label("L_collect")
    g(f"v_min_u32 v{vM}, -2, v{vX}")
    g(f"v_min_u32 v{vL}, -2, v{vX+1}")
    g("s_mov_b32 s30, 0xfffffff0")
    g("s_mov_b32 s31, 0xfffffff0")
    g("s_mov_b64 exec, s[30:31]")
    g(f"global_load_dwordx2 {r2(vM)}, v{vMLA}, s[20:21] sc1")
    g("s_mov_b64 exec, -1")
    if a.otouch:
        g(f"global_load_dword v{vY}, v{vOut}, s[16:17]")
    readfactors(vA, SG)
    g(f"s_mov_b32 s38, 0")
    g.label("L_mlpoll")
    g("s_waitcnt vmcnt(0)")
    g(f"v_max_u32 v{vA}, v{vM}, v{vL}")
    g(f"v_cmp_eq_u32 s[30:31], -1, v{vA}")
    g("s_add_u32 s38, s38, 1")
    g("s_cmp_eq_u64 s[30:31], 0")
    g("s_cbranch_scc1 L_mlok")
    g("s_mov_b64 exec, s[30:31]")
    g(f"global_load_dwordx2 {r2(vM)}, v{vMLA}, s[20:21] sc1")
    g("s_mov_b64 exec, -1")
    g(f"s_cmp_lt_u32 s38, {a.maxpoll}")
    g("s_cbranch_scc1 L_mlpoll")
    g("s_waitcnt vmcnt(0)")
    g.label("L_mlok")
    def oround(masked):
        for i in range(7):
            if masked:
                g(f"s_mov_b64 exec, s[{SM+2*i}:{SM+2*i+1}]")
            g(f"global_load_dwordx4 {r4(RO+4*i)}, v{vRA[i]}, s[20:21] sc1")
        if masked:
            g("s_mov_b64 exec, -1")
    if not a.amid:
        oround(False)
    lane_combine(True)
    g(f"v_rcp_f32 v{vB}, v{vX+1}")
    g("s_nop 1")
    g(f"v_mul_f32_dpp v{vA}, v{vB}, v{vA} quad_perm:[1,1,3,3] {DPPALL}")
    g(f"v_mul_f32_dpp v{vC}, v{vB}, v{vC} quad_perm:[1,1,3,3] {DPPALL}")
    readfactors(vA, SF)
    g(f"v_readlane_b32 s{STR}, v{vC}, 0")
    g(f"v_readlane_b32 s{STR+1}, v{vC}, 2")
    for i in range(7):
        g(f"s_mov_b64 s[{SM+2*i}:{SM+2*i+1}], -1")
    g(f"v_pk_mul_f32 {r2(vX)}, {r2(vVT)}, s[{STR}:{STR+1}] op_sel:[0,0] op_sel_hi:[1,0]")
    g(f"v_pk_mul_f32 {r2(vX+2)}, {r2(vVT)}, s[{STR}:{STR+1}] op_sel:[0,1] op_sel_hi:[1,1]")
    if a.amid:
        g("s_barrier")
        oround(False)
        if stamp:
            g("s_memrealtime s[62:63]")
    local_o()
    pk("x", ACC, ACC, SF, vX)
    g("s_lshl_b32 s38, s38, 16")
    for _ in range(a.depth - 2):
        oround(False)
    g.label("L_opoll")
    oround(True)
    g(f"s_waitcnt vmcnt({7*(a.depth-1)})")
    for i in range(7):
        pk("x", vY, RO + 4 * i, SF + 2 + 2 * i, ACC if i == 0 else vY)
    g(f"v_pk_add_f32 {r2(vX)}, {r2(vY)}, {r2(vY+2)}")
    g(f"v_cvt_pk_bf16_f32 v{D0}, v{vY}, v{vY+1}")
    g(f"v_cmp_u_f32 vcc, v{vX}, v{vX+1}")
    g(f"v_cvt_pk_bf16_f32 v{D0+1}, v{vY+2}, v{vY+3}")
    g("s_add_u32 s38, s38, 1")
    g("s_cmp_eq_u64 vcc, 0")
    g("s_cbranch_scc1 L_out")
    g.c("a NaN: find the lanes whose record words are still empty")
    g("s_mov_b64 s[30:31], 0")
    for i in range(7):
        g(f"v_max3_u32 v{vA}, v{RO+4*i}, v{RO+4*i+1}, v{RO+4*i+2}")
        g(f"v_max_u32 v{vA}, v{vA}, v{RO+4*i+3}")
        g(f"v_cmp_eq_u32 s[{SM+2*i}:{SM+2*i+1}], -1, v{vA}")
    g("s_and_b32 s3, s38, 0xffff")
    g(f"s_cmp_ge_u32 s3, {a.maxpoll}")
    g("s_cbranch_scc1 L_out")
    for i in range(7):
        g(f"s_or_b64 s[30:31], s[30:31], s[{SM+2*i}:{SM+2*i+1}]")
    g("s_cbranch_scc1 L_opoll")
    g.c("all words present (they may have landed after the trial sum): redo it once")
    for i in range(7):
        pk("x", vY, RO + 4 * i, SF + 2 + 2 * i, ACC if i == 0 else vY)
    g(f"v_cvt_pk_bf16_f32 v{D0}, v{vY}, v{vY+1}")
    g(f"v_cvt_pk_bf16_f32 v{D0+1}, v{vY+2}, v{vY+3}")
    g.label("L_out")
    of = (" " + a.outflags) if a.outflags else ""
    g(f"global_store_dword v{vOut}, v{D0}, s[16:17]{of}")
    g(f"global_store_dword v{vOut}, v{D0+1}, s[16:17] offset:256{of}")
    put_stamps(True)
    g.label("L_end")
    g("s_endpgm")

    assert nvgpr <= 168
    lds = max(LDS_T0 + 16, a.lds)
    nv = nvgpr
    out = HEADER
    out += f"; @launch grid=(256,1,1) block=({(NW+1)*64},1,1) lds={lds}\n"
    out += f""".amdgcn_target "amdgcn-amd-amdhsa--gfx950"
.text
.globl {NAME}_kernel
.p2align 8
.type {NAME}_kernel,@function
{NAME}_kernel:
"""
    out += g.text()
    out += f""".section .rodata,"a"
.p2align 6
.amdhsa_kernel {NAME}_kernel
  .amdhsa_next_free_vgpr {nv}
  .amdhsa_next_free_sgpr 100
  .amdhsa_accum_offset {(nv + 3) // 4 * 4}
  .amdhsa_group_segment_fixed_size 0
  .amdhsa_kernarg_size 72
  .amdhsa_user_sgpr_count 2
  .amdhsa_user_sgpr_kernarg_segment_ptr 1
  .amdhsa_system_sgpr_workgroup_id_x 1
.end_amdhsa_kernel
"""
    return out


if __name__ == "__main__":
    ap = argparse.ArgumentParser()
    ap.add_argument("-o", default=None)
    ap.add_argument("--ldflags", default="nt")
    ap.add_argument("--outflags", default="")
    ap.add_argument("--xcdmap", type=int, default=1)
    ap.add_argument("--win", type=int, default=5)
    ap.add_argument("--pat", default="lljjjwwwttsss")
    ap.add_argument("--rot", default="pair:0")
    ap.add_argument("--pace", type=int, default=110)
    ap.add_argument("--poff", type=int, default=150)
    ap.add_argument("--pstep", type=int, default=4)
    ap.add_argument("--ws", type=int, default=3)
    ap.add_argument("--ws2", type=int, default=2)
    ap.add_argument("--far", type=int, default=0)
    ap.add_argument("--lev", default="")
    ap.add_argument("--first", type=int, default=1000)
    ap.add_argument("--sync", type=int, default=1)
    ap.add_argument("--syncat", default="4")
    ap.add_argument("--amid", type=int, default=1)
    ap.add_argument("--trace", type=int, default=0)
    ap.add_argument("--l2fast", type=int, default=0)
    ap.add_argument("--resent", type=int, default=0)
    ap.add_argument("--otouch", type=int, default=0)
    ap.add_argument("--l2flag", default="")
    ap.add_argument("--nosent", type=int, default=0)
    ap.add_argument("--only", type=lambda x: int(x, 0), default=255)
    ap.add_argument("--pacev", type=int, default=0)
    ap.add_argument("--p8", type=int, default=0)
    ap.add_argument("--p8v", type=int, default=0)
    ap.add_argument("--syncmax", type=int, default=300)
    ap.add_argument("--depth", type=int, default=2)
    ap.add_argument("--qfirst", type=int, default=1)
    ap.add_argument("--maxpoll", type=int, default=20000)
    ap.add_argument("--lds", type=int, default=90000)
    ap.add_argument("--stamp", type=int, default=0)
    ap.add_argument("--interp", type=int, default=0)
    ap.add_argument("--beta", type=float, default=1.0)
    ap.add_argument("--gamma", type=float, default=0.0)
    ap.add_argument("--midx", type=int, default=0)
    a = ap.parse_args()
    a.syncat = [int(x) for x in a.syncat.split(",")]
    a.pacev = a.pacev or a.pace
    if a.p8:
        a.pace = 1
    else:
        a.p8, a.p8v = a.pace * 8 // a.pstep, a.pacev * 8 // a.pstep
    a.p8v = a.p8v or a.p8
    if a.lev:
        a.lev = [tuple(int(y) for y in x.replace("m", "-").split(":")) for x in a.lev.split(",")]
    else:
        a.lev = [(0, a.ws)] + ([(-a.far, a.ws2)] if a.far else [])
    if a.rot == "none":
        a.rot = ""
    s = gen(a)
    if a.o:
        open(a.o, "w").write(s)
    else:
        sys.stdout.write(s)
```
